```python
import torch

def _softmax(x, axis=-1):
    return torch.softmax(x, dim=axis)
def _gelu(x):
    return torch.nn.functional.gelu(x, approximate="tanh")
def _silu(x):
    return torch.nn.functional.silu(x)
def _sigmoid(x):
    return torch.sigmoid(x)
def _layernorm(x, axis=-1, eps=1e-5):
    m = x.mean(dim=axis, keepdim=True)
    v = x.var(dim=axis, keepdim=True, unbiased=False)
    return (x - m) / torch.sqrt(v + eps)
def _scatter_add(tgt, idx, src, axis=0):
    return tgt.clone().index_add_(axis, idx, src)
def _segment_sum(src, seg, n):
    out = torch.zeros((n,) + src.shape[1:], dtype=src.dtype)
    return out.index_add_(0, seg, src)
def _pad(x, pw):
    flat = tuple(v for pair in reversed(pw) for v in pair)
    return torch.nn.functional.pad(x, flat)

kernel_name = 'gated_mix__ssm_conv_s4d__mixer_token_mlp__prompt'

def setup_inputs():

    _w = (lambda a: (lambda t: t.to(torch.bfloat16) if t.is_floating_point() else t)(torch.as_tensor(a)))
    def _A_setup():
        Bsz, L, D, N = 1, 2048, 576, 128
        return {
            "u": _w((lambda *s: torch.randn(*s, dtype=torch.bfloat16) * 0.05)(Bsz, L, D)),
            "log_A_real": _w((lambda *s: torch.randn(*s, dtype=torch.bfloat16) * 3.2)(D, N) * 0.5),
            "A_imag": _w((lambda *s: torch.randn(*s, dtype=torch.bfloat16) * 0.05)(D, N) * 3.14),
            "C_real": _w((lambda *s: torch.randn(*s, dtype=torch.bfloat16) * 0.1)(D, N) / N ** 0.5),
            "C_imag": _w((lambda *s: torch.randn(*s, dtype=torch.bfloat16) * 0.1)(D, N) / N ** 0.5),
            "log_dt": _w((lambda *s: torch.randn(*s, dtype=torch.bfloat16) * 0.05)(D) * 0.5 - 4.0),
            "D_skip": _w((lambda *s: torch.randn(*s, dtype=torch.bfloat16) * 0.05)(D)),
        }
    _A_in = _A_setup()

    def _B_setup():
        B, S, D, F = 1, 2048, 576, 4608
        return {
            "x": _w((lambda *s: torch.randn(*s, dtype=torch.bfloat16) * 0.05)(B, S, D)),
            "w1": _w((lambda *s: torch.randn(*s, dtype=torch.bfloat16) * 0.2)(S, F) * (S ** -0.5)),
            "b1": _w((lambda *s: torch.randn(*s, dtype=torch.bfloat16) * 3.2)(F) * 0.02),
            "w2": _w((lambda *s: torch.randn(*s, dtype=torch.bfloat16) * 0.05)(F, S) * (F ** -0.5)),
            "b2": _w((lambda *s: torch.randn(*s, dtype=torch.bfloat16) * 0.1)(S) * 0.02),
        }
    _B_in = _B_setup()

    return {
        "A_u": _A_in["u"],
        "A_log_A_real": _A_in["log_A_real"],
        "A_A_imag": _A_in["A_imag"],
        "A_C_real": _A_in["C_real"],
        "A_C_imag": _A_in["C_imag"],
        "A_log_dt": _A_in["log_dt"],
        "A_D_skip": _A_in["D_skip"],
        "B_x": _B_in["x"],
        "B_w1": _B_in["w1"],
        "B_b1": _B_in["b1"],
        "B_w2": _B_in["w2"],
        "B_b2": _B_in["b2"],
        "gate_w": _w((lambda *s: torch.randn(*s, dtype=torch.bfloat16) * 0.05)(576) * 16.0),
    }

def reference(A_u, A_log_A_real, A_A_imag, A_C_real, A_C_imag, A_log_dt, A_D_skip, B_x, B_w1, B_b1, B_w2, B_b2, gate_w):
    def _A_ref(u, log_A_real, A_imag, C_real, C_imag, log_dt, D_skip):
        L = u.shape[1]
        dt = torch.exp(log_dt)
        A = -torch.exp(log_A_real) + 1j * A_imag
        C = (C_real + 1j * C_imag) * dt[:, None]
        pos = (lambda x, dt: x.to(dt))(torch.arange(L), log_dt.dtype)
        P = torch.exp((A * dt[:, None])[:, :, None] * pos[None, None, :])
        K = 2.0 * torch.einsum("dn,dnl->dl", C, P).real
        L2 = 2 * L
        u_t = (lambda x, *d: x.permute(*d))(u, 0, 2, 1)
        Kf = (lambda x, *a, **k: torch.fft.rfft(x.float(), *a, **k))(K, L2)
        Uf = (lambda x, *a, **k: torch.fft.rfft(x.float(), *a, **k))(u_t, L2)
        y = (lambda x, *a, **k: torch.fft.irfft(x, *a, **k).to(torch.bfloat16))(Uf * Kf[None, :, :], L2)[:, :, :L]
        y = (lambda x, *d: x.permute(*d))(y, 0, 2, 1)
        return y + u * D_skip[None, None, :]

    def _B_ref(x, w1, b1, w2, b2):
        B, S, D = x.shape
        h = _layernorm(x, axis=-1)
        u = torch.einsum("bsd,sf->bdf", h, w1) + b1
        u = _gelu(u)
        y = torch.einsum("bdf,fs->bds", u, w2) + b2
        return (lambda x, *d: x.permute(*d))(y, 0, 2, 1)

    x = A_u
    g = _sigmoid((x * gate_w).sum(-1, keepdims=True))
    a = _A_ref(x, A_log_A_real, A_A_imag, A_C_real, A_C_imag, A_log_dt, A_D_skip)
    b = _B_ref(x, B_w1, B_b1, B_w2, B_b2)
    return g * a + (1 - g) * b
```

```python
class Asm:
    def __init__(self):
        self.L = []
    def __call__(self, s):
        for ln in s.strip("\n").split("\n"):
            ln = ln.strip()
            if ln:
                self.L.append("    " + ln)
    def label(self, s):
        self.L.append(s + ":")
    def raw(self, s):
        self.L.append(s)
    def text(self):
        return "\n".join(self.L) + "\n"

WS_HT   = 0x000000
WS_UT   = 0x240000
WS_G    = 0x480000
WS_AT   = 0x990000
WS_GATE = 0xBD0000
import os
HS = int(os.environ.get('HS', 4352))
GS = int(os.environ.get('GS', 9472))

def kernel_head(a, name):
    a.raw(".text")
    a.raw(f".globl {name}")
    a.raw(".p2align 8")
    a.raw(f".type {name},@function")
    a.label(name)

def kernel_desc(a, name, vgpr, sgpr=102, accum=None):
    acc = accum if accum is not None else ((vgpr + 3) // 4) * 4
    a.raw('.section .rodata,"a"')
    a.raw(".p2align 6")
    a.raw(f".amdhsa_kernel {name}")
    a.raw(f"  .amdhsa_next_free_vgpr {vgpr}")
    a.raw(f"  .amdhsa_next_free_sgpr {sgpr}")
    a.raw(f"  .amdhsa_accum_offset {acc}")
    a.raw("  .amdhsa_group_segment_fixed_size 0")
    a.raw("  .amdhsa_kernarg_size 128")
    a.raw("  .amdhsa_user_sgpr_count 2")
    a.raw("  .amdhsa_user_sgpr_kernarg_segment_ptr 1")
    a.raw("  .amdhsa_system_sgpr_workgroup_id_x 1")
    a.raw(".end_amdhsa_kernel")

def srd(a, d, b, nbytes, add=0):
    if add:
        a(f"s_add_u32 s{d}, s{b}, {hex(add)}")
        a(f"s_addc_u32 s{d+1}, s{b+1}, 0")
    else:
        a(f"s_mov_b32 s{d}, s{b}")
        a(f"s_mov_b32 s{d+1}, s{b+1}")
    a(f"s_mov_b32 s{d+2}, {hex(nbytes)}")
    a(f"s_mov_b32 s{d+3}, 0x00020000")

def rne_pair(a, x, y, tmp):
    a(f"v_cvt_pk_bf16_f32 v{tmp}, v{x}, v{y}")
    a(f"v_lshlrev_b32 v{x}, 16, v{tmp}")
    a(f"v_and_b32 v{y}, 0xffff0000, v{tmp}")

def row16_sum(a, v, tmp):
    for r in (8, 4, 2, 1):
        a("s_nop 1")
        a(f"v_add_f32_dpp v{v}, v{v}, v{v} row_ror:{r} row_mask:0xf bank_mask:0xf")
```

```python
from common import *

def gemm_body(a, P, nsteps, S, stage, acc0, fa, fb, tr_is_A,
              emit_reads, emit_dma, ndma):
    def mfmas(base):
        out = []
        for t in range(2):
            for d in range(3):
                tr = f"v[{base+4*t}:{base+4*t+3}]"
                di = f"v[{base+8+4*d}:{base+8+4*d+3}]"
                c = acc0 + 16*(3*t + d)
                A, B = (tr, di) if tr_is_A else (di, tr)
                out.append(f"v_mfma_f32_32x32x16_bf16 v[{c}:{c+15}], {A}, {B}, v[{c}:{c+15}]")
        return out
    def iteration(i_mod, dma, last, vm):
        slot = i_mod % S
        emit_reads(a, slot, 1, fb)
        a("s_waitcnt lgkmcnt(7)")
        for m in mfmas(fa): a(m)
        if not last:
            a(f"s_waitcnt vmcnt({vm})")
            a("s_barrier")
            emit_reads(a, (slot+1) % S, 0, fa)
            a("s_waitcnt lgkmcnt(7)")
        else:
            a("s_waitcnt lgkmcnt(0)")
        ms = mfmas(fb)
        k = 0
        per = (ndma + 5)//6
        for m in ms:
            a(m)
            if dma:
                for _ in range(per):
                    if k < ndma:
                        emit_dma(a, (slot+3) % S, k); k += 1
        if dma:
            emit_dma(a, 0, -1)
    for st in range(3):
        for j in range(ndma):
            emit_dma(a, st, j)
        emit_dma(a, 0, -1)
    a(f"s_waitcnt vmcnt({2*ndma})")
    a("s_barrier")
    emit_reads(a, 0, 0, fa)
    ngroups = nsteps // S
    assert nsteps % S == 0 and S == 4
    a(f"s_mov_b32 s40, {ngroups-1}")
    a.label(f"L_{P}_loop")
    for i in range(S):
        iteration(i, True, False, ndma)
    a("s_sub_u32 s40, s40, 1")
    a("s_cmp_lg_u32 s40, 0")
    a(f"s_cbranch_scc1 L_{P}_loop")
    iteration(0, True, False, ndma)
    iteration(1, False, False, ndma)
    iteration(2, False, False, 0)
    iteration(3, False, True, 0)
```

```python
from common import *
def k0(a):
    name = "prep_kernel"
    kernel_head(a, name)
    a(f"""
    s_cmp_ge_u32 s2, 256
    s_cbranch_scc1 L_k0_done
    s_load_dwordx2 s[4:5], s[0:1], 0
    s_load_dwordx2 s[6:7], s[0:1], 0
    s_load_dwordx2 s[8:9], s[0:1], 96
    s_load_dwordx2 s[10:11], s[0:1], 120
    s_lshr_b32 s12, s2, 7
    s_and_b32 s13, s2, 127
    v_lshrrev_b32 v1, 4, v0
    v_and_b32 v2, 15, v0
    s_lshl_b32 s14, s13, 4
    v_add_u32 v3, s14, v1
    v_mul_u32_u24 v3, 0x480, v3
    v_mul_u32_u24 v4, 72, v2
    v_add_u32 v3, v3, v4
    s_waitcnt lgkmcnt(0)
    s_cmp_eq_u32 s12, 0
    s_cselect_b32 s4, s6, s4
    s_cselect_b32 s5, s7, s5
    s_cselect_b32 s15, {WS_HT}, {hex(WS_UT)}
    """)
    srd(a, 16, 4, 2359296)
    srd(a, 20, 8, 1152)
    a("s_add_u32 s24, s10, s15")
    a("s_addc_u32 s25, s11, 0")
    a("s_mov_b32 s26, 2359296")
    a("s_mov_b32 s27, 0x00020000")
    srd(a, 28, 10, 8192, WS_GATE)
    for j in range(9):
        a(f"buffer_load_dwordx2 v[{10+2*j}:{11+2*j}], v3, s[16:19], 0 offen offset:{8*j}")
    a("s_cmp_eq_u32 s12, 0")
    a("s_cbranch_scc0 L_k0_gate")
    a("s_waitcnt vmcnt(0)")
    for j in range(18):
        a(f"v_lshlrev_b32 v{30+2*j}, 16, v{10+j}")
        a(f"v_and_b32 v{31+2*j}, 0xffff0000, v{10+j}")
    a("v_add_f32 v5, v30, v31")
    for e in range(2, 36):
        a(f"v_add_f32 v5, v5, v{30+e}")
    row16_sum(a, 5, 6)
    a("v_mul_f32 v5, 0x3ae38e39, v5")
    a("v_mov_b32 v6, 0")
    for e in range(36):
        a(f"v_sub_f32 v7, v{30+e}, v5")
        a("v_fmac_f32 v6, v7, v7")
    row16_sum(a, 6, 7)
    a("v_mul_f32 v6, 0x3ae38e39, v6")
    rne_pair(a, 5, 6, 7)
    a("v_add_f32 v6, 0x3727c5ac, v6")
    a("v_mov_b32 v8, v6")
    rne_pair(a, 6, 8, 7)
    a("v_sqrt_f32 v6, v6")
    a("s_nop 0")
    a("v_mov_b32 v8, v6")
    rne_pair(a, 6, 8, 7)
    a("v_rcp_f32 v8, v6")
    a("s_nop 0")
    a("v_fma_f32 v9, -v6, v8, 2.0")
    a("v_mul_f32 v8, v8, v9")
    for j in range(18):
        x, y = 30+2*j, 31+2*j
        a(f"v_sub_f32 v{x}, v{x}, v5")
        a(f"v_sub_f32 v{y}, v{y}, v5")
        rne_pair(a, x, y, 7)
        a(f"v_mul_f32 v{x}, v{x}, v8")
        a(f"v_mul_f32 v{y}, v{y}, v8")
        a(f"v_cvt_pk_bf16_f32 v{10+j}, v{x}, v{y}")
    a("s_branch L_k0_store")
    a.label("L_k0_gate")
    for j in range(9):
        a(f"buffer_load_dwordx2 v[{70+2*j}:{71+2*j}], v4, s[20:23], 0 offen offset:{8*j}")
    a("s_waitcnt vmcnt(0)")
    a("v_mov_b32 v5, 0")
    for j in range(18):
        a(f"v_lshlrev_b32 v30, 16, v{10+j}")
        a(f"v_and_b32 v31, 0xffff0000, v{10+j}")
        a(f"v_lshlrev_b32 v32, 16, v{70+j}")
        a(f"v_and_b32 v33, 0xffff0000, v{70+j}")
        a("v_mul_f32 v30, v30, v32")
        a("v_mul_f32 v31, v31, v33")
        rne_pair(a, 30, 31, 7)
        a("v_add_f32 v5, v5, v30")
        a("v_add_f32 v5, v5, v31")
    row16_sum(a, 5, 6)
    a("v_mov_b32 v6, v5")
    rne_pair(a, 5, 6, 7)
    a("v_mul_f32 v5, 0xbfb8aa3b, v5")
    a("v_exp_f32 v5, v5")
    a("s_nop 0")
    a("v_add_f32 v5, 1.0, v5")
    a("v_rcp_f32 v6, v5")
    a("s_nop 0")
    a("v_fma_f32 v9, -v5, v6, 2.0")
    a("v_mul_f32 v5, v6, v9")
    a("v_mov_b32 v6, v5")
    rne_pair(a, 5, 6, 7)
    a("v_add_u32 v6, s14, v1")
    a("v_lshlrev_b32 v6, 2, v6")
    a("v_cmp_eq_u32 vcc, 0, v2")
    a("s_and_saveexec_b64 s[32:33], vcc")
    a("buffer_store_dword v5, v6, s[28:31], 0 offen")
    a("s_mov_b64 exec, s[32:33]")
    a.label("L_k0_store")
    a("v_mul_u32_u24 v4, 0x480, v2")
    a("v_lshl_add_u32 v4, v1, 1, v4")
    for j in range(18):
        a(f"ds_write_b16 v4, v{10+j} offset:{(2*j)*32}")
        a(f"ds_write_b16_d16_hi v4, v{10+j} offset:{(2*j+1)*32}")
    a("s_waitcnt lgkmcnt(0)")
    a("s_barrier")
    a("v_lshlrev_b32 v4, 5, v0")
    a("v_lshlrev_b32 v5, 12, v0")
    a("s_lshl_b32 s14, s13, 5")
    a("v_add_u32 v5, s14, v5")
    a("v_readfirstlane_b32 s34, v0")
    for j in range(3):
        if j == 2:
            a("s_cmp_ge_u32 s34, 64")
            a("s_cbranch_scc1 L_k0_done")
        a(f"ds_read_b128 v[10:13], v4 offset:{j*8192}")
        a(f"ds_read_b128 v[14:17], v4 offset:{j*8192+16}")
        a("s_waitcnt lgkmcnt(0)")
        a(f"s_mov_b32 s35, {hex(j*256*4096)}")
        a("buffer_store_dwordx4 v[10:13], v5, s[24:27], s35 offen")
        a("buffer_store_dwordx4 v[14:17], v5, s[24:27], s35 offen offset:16")
        a("s_nop 1")
    a.label("L_k0_done")
    a("s_endpgm")
    kernel_desc(a, name, 96)
    return (name, 256, 256, 18432)
```

```python
from common import *
from gemm import gemm_body

def k1(a):
    name = "gemm1_kernel"
    P = "g1"
    STAGE = 0x7000
    kernel_head(a, name)
    a(f"""
    s_cmp_ge_u32 s2, 216
    s_cbranch_scc1 L_g1_done
    s_load_dwordx2 s[4:5], s[0:1], 64
    s_load_dwordx2 s[6:7], s[0:1], 72
    s_load_dwordx2 s[10:11], s[0:1], 120
    s_and_b32 s12, s2, 7
    s_lshr_b32 s13, s2, 3
    s_mul_i32 s12, s12, 27
    s_add_u32 s12, s12, s13
    s_mul_hi_u32 s13, s12, 0x2aaaaaab
    s_mul_i32 s14, s13, 6
    s_sub_u32 s14, s12, s14
    v_lshrrev_b32 v1, 6, v0
    v_and_b32 v2, 63, v0
    s_nop 0
    v_readfirstlane_b32 s15, v1
    s_waitcnt lgkmcnt(0)
    """)
    srd(a, 16, 4, 18874368)
    srd(a, 20, 10, 2359296, WS_HT)
    srd(a, 24, 6, 9216)
    srd(a, 28, 10, 5308416, WS_G)
    a(f"""
    v_lshrrev_b32 v3, 4, v2
    v_and_b32 v4, 15, v2
    v_lshrrev_b32 v5, 2, v4
    v_xor_b32 v5, v5, v3
    v_lshlrev_b32 v5, 6, v5
    v_and_b32 v6, 3, v2
    v_lshl_add_u32 v5, v6, 4, v5
    v_mul_u32_u24 v6, 0x2400, v3
    v_add_u32 v200, v5, v6
    v_lshrrev_b32 v5, 3, v2
    v_and_b32 v6, 7, v2
    v_xor_b32 v7, v6, v3
    v_lshlrev_b32 v7, 4, v7
    v_lshl_add_u32 v201, v5, 12, v7
    v_xor_b32 v202, 64, v201
    ; ---- soffsets
    s_lshl_b32 s34, s13, 8
    s_mul_i32 s35, s15, {16*9216}
    s_add_u32 s34, s34, s35
    s_mul_i32 s35, s14, 96
    s_mul_i32 s36, s15, 24
    s_add_u32 s35, s35, s36
    s_lshl_b32 s35, s35, 12
    s_lshl_b32 s36, s15, 12
    s_mul_i32 s37, s15, 3072
    s_add_u32 s37, s37, 0x4000
    s_lshr_b32 s38, s15, 1
    s_and_b32 s39, s15, 1
    v_lshrrev_b32 v5, 5, v2
    v_lshrrev_b32 v6, 2, v4
    v_lshl_add_u32 v7, v5, 3, v6
    v_lshlrev_b32 v7, 8, v7
    v_bfe_u32 v8, v2, 4, 1
    v_lshlrev_b32 v8, 5, v8
    v_and_b32 v9, 3, v2
    v_lshl_add_u32 v8, v9, 3, v8
    v_add_u32 v7, v7, v8
    s_lshl_b32 s41, s39, 13
    v_add_u32 v7, s41, v7
    s_lshl_b32 s41, s38, 1
    v_xor_b32 v8, s41, v6
    v_lshl_add_u32 v204, v8, 6, v7
    s_add_u32 s41, s41, 1
    v_xor_b32 v8, s41, v6
    v_lshl_add_u32 v205, v8, 6, v7
    v_and_b32 v8, 31, v2
    v_bfe_u32 v9, v8, 1, 3
    s_lshl_b32 s41, s39, 2
    v_add_u32 v10, s41, v5
    v_xor_b32 v11, v10, v9
    v_lshlrev_b32 v11, 4, v11
    v_lshl_add_u32 v206, v8, 7, v11
    v_add_u32 v10, 2, v10
    v_xor_b32 v11, v10, v9
    v_lshlrev_b32 v11, 4, v11
    v_lshl_add_u32 v207, v8, 7, v11
    v_add_u32 v206, 0x4000, v206
    v_add_u32 v207, 0x4000, v207
    v_add_u32 v208, {2*STAGE}, v204
    v_add_u32 v209, {2*STAGE}, v205
    v_add_u32 v210, {2*STAGE}, v206
    v_add_u32 v211, {2*STAGE}, v207
    """)
    a(f"""
    s_lshl_b32 s41, s13, 8
    s_lshl_b32 s42, s15, 6
    s_add_u32 s41, s41, s42
    v_lshlrev_b32 v12, 3, v5
    v_add_u32 v12, s41, v12
    v_mov_b32 v222, v12
    """)
    for g in range(4):
        a(f"buffer_load_dwordx2 v[{212+2*g}:{213+2*g}], v12, s[24:27], 0 offen offset:{16*g}")
    for r in range(96):
        a(f"v_mov_b32 v{r+100}, 0")
    def emit_reads(a, slot, half, base):
        o = (slot % 2) * STAGE
        vb = 204 if slot < 2 else 208
        for t in range(2):
            a(f"ds_read_b64_tr_b16 v[{base+4*t}:{base+4*t+1}], v{vb+t} offset:{o + half*4096}")
            a(f"ds_read_b64_tr_b16 v[{base+4*t+2}:{base+4*t+3}], v{vb+t} offset:{o + half*4096 + 1024}")
        for d in range(3):
            a(f"ds_read_b128 v[{base+8+4*d}:{base+8+4*d+3}], v{vb+2+half} offset:{o + d*4096}")
    def emit_dma(a, slot, j):
        if j < 0:
            a(f"s_add_u32 s34, s34, {64*9216}")
            a("s_add_u32 s35, s35, 128")
            return
        if j < 4:
            a(f"s_add_u32 m0, s36, {slot*STAGE + j*1024}")
            a(f"s_add_u32 s42, s34, {4*j*9216}")
            a("buffer_load_dwordx4 v200, s[16:19], s42 offen lds")
        else:
            jj = j - 4
            a(f"s_add_u32 m0, s37, {slot*STAGE + jj*1024}")
            a(f"s_add_u32 s42, s35, {8*jj*4096}")
            a(f"buffer_load_dwordx4 v{220 + (jj & 1)}, s[20:23], s42 offen lds")
    a("""
    v_mov_b32 v220, v201
    v_mov_b32 v221, v202
    s_and_b32 s41, s15, 1
    s_cmp_eq_u32 s41, 0
    s_cbranch_scc1 L_g1_par
    v_mov_b32 v220, v202
    v_mov_b32 v221, v201
    """)
    a.label("L_g1_par")
    gemm_body(a, P, 32, 4, STAGE, 100, 10, 30, True, emit_reads, emit_dma, 7)
    a("s_nop 15")
    a("s_barrier")
    a(f"""
    v_lshlrev_b32 v3, 4, v2
    s_mul_i32 s41, s15, 12288
    v_add_u32 v3, s41, v3
    s_xor_b32 s42, s15, 1
    s_mul_i32 s42, s42, 12288
    v_lshlrev_b32 v4, 4, v2
    v_add_u32 v4, s42, v4
    s_cmp_eq_u32 s39, 0
    s_cbranch_scc0 L_g1_e1
    """)
    for g in range(12):
        a(f"ds_write_b128 v3, v[{148+4*g}:{151+4*g}] offset:{g*1024}")
    a("s_branch L_g1_e2")
    a.label("L_g1_e1")
    for g in range(12):
        a(f"ds_write_b128 v3, v[{100+4*g}:{103+4*g}] offset:{g*1024}")
    a("s_waitcnt lgkmcnt(0)")
    for r in range(48):
        a(f"v_mov_b32 v{100+r}, v{148+r}")
    a.label("L_g1_e2")
    a("s_waitcnt lgkmcnt(0)")
    a("s_barrier")
    for g in range(12):
        a(f"ds_read_b128 v[{148+4*g}:{151+4*g}], v4 offset:{g*1024}")
    a(f"""
    v_and_b32 v8, 31, v2
    s_mul_i32 s41, s14, 96
    v_add_u32 v8, s41, v8
    v_mul_u32_u24 v8, 0x2400, v8
    v_add_u32 v8, v8, v222
    s_mov_b32 s44, 0x3dd2d3e8
    s_mov_b32 s45, 0x40135761
    v_mov_b32 v9, s45
    s_waitcnt vmcnt(0) lgkmcnt(0)
    """)
    for g in range(4):
        a(f"v_lshlrev_b32 v{10+4*g}, 16, v{212+2*g}")
        a(f"v_and_b32 v{11+4*g}, 0xffff0000, v{212+2*g}")
        a(f"v_lshlrev_b32 v{12+4*g}, 16, v{213+2*g}")
        a(f"v_and_b32 v{13+4*g}, 0xffff0000, v{213+2*g}")
    for d in range(3):
        for g in range(4):
            b = 100 + 16*d + 4*g
            for r in range(4):
                a(f"v_add_f32 v{b+r}, v{b+r}, v{b+48+r}")
            rne_pair(a, b, b+1, 30)
            rne_pair(a, b+2, b+3, 31)
            for r in range(4):
                a(f"v_add_f32 v{b+r}, v{b+r}, v{10+4*g+r}")
            rne_pair(a, b, b+1, 30)
            rne_pair(a, b+2, b+3, 31)
            for r in range(4):
                a(f"v_mul_f32 v{32+r}, v{b+r}, v{b+r}")
            for r in range(4):
                a(f"v_fma_f32 v{32+r}, v{32+r}, s44, v9")
            for r in range(4):
                a(f"v_mul_f32 v{32+r}, v{32+r}, v{b+r}")
            for r in range(4):
                a(f"v_exp_f32 v{32+r}, v{32+r}")
            for r in range(4):
                a(f"v_add_f32 v{32+r}, 1.0, v{32+r}")
            for r in range(4):
                a(f"v_rcp_f32 v{32+r}, v{32+r}")
            a("s_nop 0")
            for r in range(4):
                a(f"v_fma_f32 v{b+r}, -v{b+r}, v{32+r}, v{b+r}")
            a(f"v_cvt_pk_bf16_f32 v{36}, v{b}, v{b+1}")
            a(f"v_cvt_pk_bf16_f32 v{37}, v{b+2}, v{b+3}")
            a(f"s_mov_b32 s46, {d*32*9216}")
            a(f"buffer_store_dwordx2 v[36:37], v8, s[28:31], s46 offen offset:{16*g}")
    a.label("L_g1_done")
    a("s_endpgm")
    kernel_desc(a, name, 224)
    return (name, 216, 256, 4*STAGE)
```

```python
from common import *
from gemm import gemm_body

def k2(a):
    name = "gemm2_kernel"
    P = "g2"
    STAGE = 0xA000
    kernel_head(a, name)
    a(f"""
    s_cmp_ge_u32 s2, 192
    s_cbranch_scc1 L_g2_done
    s_load_dwordx2 s[4:5], s[0:1], 80
    s_load_dwordx2 s[6:7], s[0:1], 88
    s_load_dwordx2 s[8:9], s[0:1], 104
    s_load_dwordx2 s[10:11], s[0:1], 120
    s_and_b32 s12, s2, 7
    s_lshr_b32 s13, s2, 3
    s_mul_i32 s12, s12, 24
    s_add_u32 s12, s12, s13
    s_mul_hi_u32 s13, s12, 0x2aaaaaab
    s_mul_i32 s14, s13, 6
    s_sub_u32 s14, s12, s14
    v_lshrrev_b32 v1, 6, v0
    v_and_b32 v2, 63, v0
    s_nop 0
    v_readfirstlane_b32 s15, v1
    s_waitcnt lgkmcnt(0)
    """)
    srd(a, 16, 4, 18874368)
    srd(a, 20, 10, 5308416, WS_G)
    srd(a, 24, 6, 4096)
    srd(a, 28, 8, 2359296)
    srd(a, 48, 10, 2359296, WS_AT)
    srd(a, 52, 10, 8192, WS_GATE)
    a(f"""
    v_lshrrev_b32 v3, 3, v2
    v_and_b32 v4, 7, v2
    v_lshrrev_b32 v5, 2, v4
    v_bfe_u32 v6, v2, 4, 1
    v_xor_b32 v5, v5, v6
    v_lshlrev_b32 v5, 6, v5
    v_and_b32 v6, 3, v2
    v_lshl_add_u32 v5, v6, 4, v5
    v_lshl_add_u32 v200, v3, 12, v5
    v_lshrrev_b32 v3, 4, v2
    v_and_b32 v4, 15, v2
    s_lshl_b32 s41, s15, 2
    v_add_u32 v5, s41, v3
    v_xor_b32 v5, v5, v4
    v_lshlrev_b32 v5, 4, v5
    v_mul_u32_u24 v6, 0x2400, v3
    v_add_u32 v201, v5, v6
    ; ---- soffsets
    s_lshl_b32 s34, s13, 7
    s_lshl_b32 s35, s15, 17
    s_add_u32 s34, s34, s35
    s_mul_i32 s35, s14, 96
    s_lshl_b32 s36, s15, 2
    s_add_u32 s35, s35, s36
    s_mul_i32 s35, s35, 9216
    s_lshl_b32 s36, s15, 12
    s_lshl_b32 s37, s15, 10
    s_add_u32 s37, s37, 0x4000
    v_lshrrev_b32 v5, 5, v2
    v_lshrrev_b32 v6, 2, v4
    v_lshl_add_u32 v7, v5, 3, v6
    v_lshlrev_b32 v7, 7, v7
    v_bfe_u32 v8, v2, 4, 1
    v_lshlrev_b32 v8, 5, v8
    v_and_b32 v9, 3, v2
    v_lshl_add_u32 v8, v9, 3, v8
    v_add_u32 v7, v7, v8
    s_lshl_b32 s41, s15, 12
    v_add_u32 v7, s41, v7
    v_bfe_u32 v8, v2, 3, 1
    v_lshl_add_u32 v204, v8, 6, v7
    v_xor_b32 v205, 64, v204
    v_and_b32 v8, 31, v2
    s_lshl_b32 s41, s15, 2
    v_add_u32 v10, s41, v5
    v_xor_b32 v11, v10, v4
    v_lshlrev_b32 v11, 4, v11
    v_lshl_add_u32 v206, v8, 8, v11
    v_add_u32 v10, 2, v10
    v_xor_b32 v11, v10, v4
    v_lshlrev_b32 v11, 4, v11
    v_lshl_add_u32 v207, v8, 8, v11
    v_add_u32 v206, 0x4000, v206
    v_add_u32 v207, 0x4000, v207
    """)
    for sl in range(1, 4):
        for q in range(4):
            a(f"v_add_u32 v{204+4*sl+q}, {sl*STAGE}, v{204+q}")
    a(f"""
    s_mul_i32 s41, s14, 96
    s_lshl_b32 s42, s15, 3
    s_add_u32 s41, s41, s42
    v_lshl_add_u32 v3, v5, 2, s41
    v_mov_b32 v222, v3
    s_lshl_b32 s42, s13, 6
    v_add_u32 v4, s42, v8
    v_mov_b32 v223, v4
    v_lshlrev_b32 v6, 12, v3
    v_lshl_add_u32 v6, v4, 1, v6
    v_lshlrev_b32 v7, 1, v4
    v_lshlrev_b32 v9, 2, v4
    """)
    for dd in range(3):
        for ss in range(2):
            for r in range(4):
                a(f"s_mov_b32 s42, {(32*dd + r)*4096}")
                a(f"buffer_load_ushort v{224 + 8*dd + 4*ss + r}, v6, s[48:51], s42 offen offset:{64*ss}")
    a("buffer_load_ushort v248, v7, s[24:27], 0 offen")
    a("buffer_load_ushort v249, v7, s[24:27], 0 offen offset:64")
    a("buffer_load_dword v250, v9, s[52:55], 0 offen")
    a("buffer_load_dword v251, v9, s[52:55], 0 offen offset:128")
    for r in range(96):
        a(f"v_mov_b32 v{r+100}, 0")
    def emit_reads(a, slot, half, base):
        vb = 204 + 4*slot
        for t in range(2):
            a(f"ds_read_b64_tr_b16 v[{base+4*t}:{base+4*t+1}], v{vb+t} offset:{half*2048}")
            a(f"ds_read_b64_tr_b16 v[{base+4*t+2}:{base+4*t+3}], v{vb+t} offset:{half*2048 + 512}")
        for d in range(3):
            a(f"ds_read_b128 v[{base+8+4*d}:{base+8+4*d+3}], v{vb+2+half} offset:{d*8192}")
    def emit_dma(a, slot, j):
        if j < 0:
            a(f"s_add_u32 s34, s34, {128*4096}")
            a("s_add_u32 s35, s35, 256")
            return
        if j < 4:
            a(f"s_add_u32 m0, s36, {slot*STAGE + j*1024}")
            a(f"s_add_u32 s42, s34, {8*j*4096}")
            a("buffer_load_dwordx4 v200, s[16:19], s42 offen lds")
        else:
            jj = j - 4
            a(f"s_add_u32 m0, s37, {slot*STAGE + jj*4096}")
            a(f"s_add_u32 s42, s35, {16*jj*9216}")
            a(f"buffer_load_dwordx4 v201, s[20:23], s42 offen lds")
    gemm_body(a, P, 36, 4, STAGE, 100, 10, 30, False, emit_reads, emit_dma, 10)
    a("s_nop 15")
    a("s_barrier")
    a(f"""
    v_lshlrev_b32 v3, 4, v2
    s_mul_i32 s41, s15, 6144
    v_add_u32 v3, s41, v3
    v_lshlrev_b32 v4, 4, v2
    s_mul_i32 s41, s15, 24576
    v_add_u32 v4, s41, v4
    v_add_u32 v5, 0xc000, v3
    """)
    for g in range(4):
        for tile in range(6):
            c = 100 + 16*tile + 4*g
            if g < 2:
                a(f"ds_write_b128 v3, v[{c}:{c+3}] offset:{g*24576 + tile*1024}")
            else:
                a(f"ds_write_b128 v5, v[{c}:{c+3}] offset:{(g-2)*24576 + tile*1024}")
    a("s_waitcnt lgkmcnt(0)")
    a("s_barrier")
    for src in range(4):
        for tile in range(6):
            a(f"ds_read_b128 v[{10 + 24*src + 4*tile}:{13 + 24*src + 4*tile}], v4 offset:{src*6144 + tile*1024}")
    a("s_waitcnt vmcnt(0) lgkmcnt(0)")
    for i in range(24):
        a(f"v_add_f32 v{10+i}, v{10+i}, v{34+i}")
        a(f"v_add_f32 v{58+i}, v{58+i}, v{82+i}")
    for i in range(24):
        a(f"v_add_f32 v{10+i}, v{10+i}, v{58+i}")
    a("""
    v_lshlrev_b32 v110, 16, v248
    v_lshlrev_b32 v111, 16, v249
    v_sub_f32 v112, 1.0, v250
    v_sub_f32 v113, 1.0, v251
    """)
    rne_pair(a, 112, 113, 114)
    a(f"""
    v_mul_u32_u24 v6, 0x480, v223
    v_lshl_add_u32 v6, v222, 1, v6
    """)
    for ss in range(2):
        for dd in range(3):
            b = 10 + 4*(3*ss + dd)
            av = 224 + 8*dd + 4*ss
            rne_pair(a, b, b+1, 114)
            rne_pair(a, b+2, b+3, 115)
            for r in range(4):
                a(f"v_add_f32 v{b+r}, v{b+r}, v{110+ss}")
            rne_pair(a, b, b+1, 114)
            rne_pair(a, b+2, b+3, 115)
            for r in range(4):
                a(f"v_mul_f32 v{b+r}, v{b+r}, v{112+ss}")
                a(f"v_lshlrev_b32 v{av+r}, 16, v{av+r}")
                a(f"v_mul_f32 v{av+r}, v{av+r}, v{250+ss}")
            rne_pair(a, b, b+1, 114)
            rne_pair(a, b+2, b+3, 115)
            rne_pair(a, av, av+1, 114)
            rne_pair(a, av+2, av+3, 115)
            for r in range(4):
                a(f"v_add_f32 v{b+r}, v{b+r}, v{av+r}")
            a(f"v_cvt_pk_bf16_f32 v116, v{b}, v{b+1}")
            a(f"v_cvt_pk_bf16_f32 v117, v{b+2}, v{b+3}")
            a(f"s_mov_b32 s46, {ss*32*1152}")
            a(f"buffer_store_dwordx2 v[116:117], v6, s[28:31], s46 offen offset:{64*dd}")
            a("s_nop 1")
    a.label("L_g2_done")
    a("s_endpgm")
    kernel_desc(a, name, 256)
    return (name, 192, 256, 4*STAGE)
```

```python
from common import *

LOG2E = 0x3fb8aa3b
INV2PI = 0x3e22f983
CSTR = 4160
ARR = 8*CSTR
KT = 2*ARR
P2K = KT + 1280*4

def kc(a):
    name = "ssm_kernel"
    kernel_head(a, name)
    a(f"""
    s_cmp_ge_u32 s2, 576
    s_cbranch_scc1 L_kc_done
    s_load_dwordx4 s[4:7], s[0:1], 8
    s_load_dwordx4 s[8:11], s[0:1], 24
    s_load_dwordx4 s[12:15], s[0:1], 40
    s_load_dwordx2 s[16:17], s[0:1], 120
    v_lshrrev_b32 v1, 6, v0
    v_and_b32 v2, 63, v0
    v_and_b32 v3, 15, v0
    v_bfe_u32 v4, v0, 4, 2
    s_nop 0
    v_readfirstlane_b32 s18, v1
    s_waitcnt lgkmcnt(0)
    """)
    srd(a, 20, 4, 147456)
    srd(a, 24, 6, 147456)
    srd(a, 28, 8, 147456)
    srd(a, 32, 10, 147456)
    srd(a, 36, 12, 1152)
    srd(a, 40, 14, 1152)
    a(f"""
    s_lshl_b32 s19, s2, 12
    s_add_u32 s44, s16, s19
    s_addc_u32 s45, s17, 0
    s_add_u32 s48, s44, {hex(WS_AT)}
    s_addc_u32 s49, s45, 0
    s_add_u32 s44, s44, {hex(WS_UT)}
    s_addc_u32 s45, s45, 0
    s_mov_b32 s46, 4096
    s_mov_b32 s47, 0x00020000
    s_mov_b32 s50, 4096
    s_mov_b32 s51, 0x00020000
    s_lshl_b32 s19, s2, 8
    s_lshl_b32 s52, s18, 6
    s_add_u32 s19, s19, s52
    v_lshlrev_b32 v5, 4, v4
    v_add_u32 v5, s19, v5
    buffer_load_dwordx4 v[10:13], v5, s[20:23], 0 offen
    buffer_load_dwordx4 v[14:17], v5, s[24:27], 0 offen
    buffer_load_dwordx4 v[18:21], v5, s[28:31], 0 offen
    buffer_load_dwordx4 v[22:25], v5, s[32:35], 0 offen
    s_lshl_b32 s19, s2, 1
    v_mov_b32 v6, s19
    buffer_load_ushort v26, v6, s[36:39], 0 offen
    buffer_load_ushort v27, v6, s[40:43], 0 offen
    ; B frags
    v_lshlrev_b32 v6, 4, v3
    v_lshrrev_b32 v7, 1, v4
    v_lshlrev_b32 v7, 4, v7
    v_sub_u32 v6, v6, v7
    v_and_b32 v7, 1, v4
    v_lshl_add_u32 v6, v7, 3, v6
    v_lshlrev_b32 v6, 1, v6
    s_lshl_b32 s19, s18, 6
    v_subrev_u32 v6, s19, v6
    v_mov_b32 v8, 0x7ffffff0
    """)
    for i in range(16):
        a(f"v_add_u32 v7, {64*(4*i-4) & 0xffffffff}, v6")
        if i < 3:
            a("v_cmp_gt_i32 vcc, 0, v7")
            a("s_nop 1")
            a("v_cndmask_b32 v7, v7, v8, vcc")
        a(f"buffer_load_dwordx4 v[{128+4*i}:{131+4*i}], v7, s[44:47], 0 offen")
    a("v_lshlrev_b32 v7, 4, v0")
    a("buffer_load_dwordx4 v[192:195], v7, s[44:47], 0 offen")
    a("s_waitcnt vmcnt(17)")
    a(f"""
    v_lshlrev_b32 v26, 16, v26
    v_lshlrev_b32 v27, 16, v27
    v_mul_f32 v26, {hex(LOG2E)}, v26
    v_exp_f32 v26, v26
    s_nop 0
    v_mov_b32 v28, v26
    """)
    rne_pair(a, 26, 28, 29)
    a(f"""
    v_cvt_f32_u32 v30, v3
    v_mul_f32 v31, 16.0, v30
    v_add_f32 v32, v26, v26
    """)
    for r in range(16):
        a(f"v_mov_b32 v{100+r}, 0")
    a("v_mov_b32 v116, 0")
    for e in range(8):
        src = lambda base: base + e//2
        def ext(dst, base):
            if e % 2 == 0:
                a(f"v_lshlrev_b32 v{dst}, 16, v{src(base)}")
            else:
                a(f"v_and_b32 v{dst}, 0xffff0000, v{src(base)}")
        ext(40, 10); ext(41, 14); ext(42, 18); ext(43, 22)
        a(f"""
        v_mul_f32 v40, {hex(LOG2E)}, v40
        v_exp_f32 v40, v40
        v_mul_f32 v41, v41, v26
        v_mov_b32 v44, v40
        """)
        rne_pair(a, 40, 44, 45)
        a(f"""
        v_mul_f32 v40, v40, v26
        v_mul_f32 v40, {hex(LOG2E ^ 0x80000000)}, v40
        v_mul_f32 v41, {hex(INV2PI)}, v41
        v_mul_f32 v42, v42, v32
        v_mul_f32 v43, v43, v32
        v_mul_f32 v44, v40, v30
        v_mul_f32 v45, v41, v30
        v_mul_f32 v46, v40, v31
        v_mul_f32 v47, v41, v31
        v_exp_f32 v44, v44
        v_fract_f32 v45, v45
        v_exp_f32 v46, v46
        v_fract_f32 v47, v47
        v_cos_f32 v48, v45
        v_sin_f32 v49, v45
        v_cos_f32 v50, v47
        v_sin_f32 v51, v47
        s_nop 0
        v_mul_f32 v48, v48, v44
        v_mul_f32 v49, v49, v44
        v_mul_f32 v50, v50, v46
        v_mul_f32 v51, v51, v46
        """)
        for s in range(4):
            a(f"""
            v_mul_f32 v52, v50, v42
            v_fma_f32 v52, -v51, v43, v52
            v_mul_f32 v53, v50, v43
            v_fma_f32 v53, v51, v42, v53
            v_sub_f32 v53, 0, v53
            """)
            a("s_nop 1")
            c = 100 + 4*s
            a(f"v_mfma_f32_16x16x4_f32 v[{c}:{c+3}], v52, v48, v[{c}:{c+3}]")
            a(f"v_mfma_f32_16x16x4_f32 v[{c}:{c+3}], v53, v49, v[{c}:{c+3}]")
            a(f"""
            v_mul_f32 v54, v48, v48
            v_fma_f32 v54, -v49, v49, v54
            v_mul_f32 v55, v48, v49
            v_add_f32 v49, v55, v55
            v_mov_b32 v48, v54
            v_mul_f32 v54, v50, v50
            v_fma_f32 v54, -v51, v51, v54
            v_mul_f32 v55, v50, v51
            v_add_f32 v51, v55, v55
            v_mov_b32 v50, v54
            """)
        a("""
        v_mul_f32 v52, v50, v42
        v_fma_f32 v52, -v51, v43, v52
        v_add_f32 v116, v116, v52
        """)
    a("s_nop 15")
    a(f"""
    s_lshl_b32 s19, s18, 12
    v_lshlrev_b32 v5, 8, v4
    v_lshl_add_u32 v5, v3, 2, v5
    v_add_u32 v5, s19, v5
    """)
    for s in range(4):
        for r in range(4):
            a(f"ds_write_b32 v5, v{100+4*s+r} offset:{s*1024 + r*64}")
    a(f"""
    s_lshl_b32 s19, s18, 4
    v_lshlrev_b32 v6, 2, v4
    v_add_u32 v6, s19, v6
    v_cmp_eq_u32 vcc, 8, v3
    s_and_saveexec_b64 s[54:55], vcc
    v_add_u32 v6, {P2K}, v6
    ds_write_b32 v6, v116
    s_mov_b64 exec, s[54:55]
    s_waitcnt lgkmcnt(0)
    s_barrier
    v_lshlrev_b32 v5, 4, v0
    ds_read_b128 v[40:43], v5
    ds_read_b128 v[44:47], v5 offset:4096
    ds_read_b128 v[48:51], v5 offset:8192
    ds_read_b128 v[52:55], v5 offset:12288
    v_mov_b32 v6, {P2K}
    ds_read_b128 v[56:59], v6
    ds_read_b128 v[60:63], v6 offset:16
    ds_read_b128 v[64:67], v6 offset:32
    ds_read_b128 v[68:71], v6 offset:48
    s_waitcnt lgkmcnt(0)
    """)
    for r in range(4):
        a(f"v_add_f32 v{40+r}, v{40+r}, v{44+r}")
        a(f"v_add_f32 v{48+r}, v{48+r}, v{52+r}")
        a(f"v_add_f32 v{40+r}, v{40+r}, v{48+r}")
    a("v_add_f32 v56, v56, v57")
    for r in range(58, 72):
        a(f"v_add_f32 v56, v56, v{r}")
    a(f"""
    v_add_u32 v5, {KT}, v5
    ds_write_b128 v5, v[40:43]
    v_mov_b32 v57, 0
    v_mov_b32 v6, {KT + 1152*4}
    v_cmp_eq_u32 vcc, 0, v0
    s_and_saveexec_b64 s[54:55], vcc
    ds_write_b32 v6, v56
    ds_write_b32 v6, v57 offset:4
    s_mov_b64 exec, s[54:55]
    s_waitcnt lgkmcnt(0)
    s_barrier
    """)
    a(f"""
    v_lshlrev_b32 v5, 3, v0
    v_sub_u32 v5, 2047, v5
    v_mov_b32 v9, {KT + 1153*4}
    s_mov_b32 s56, 0x7fff
    """)
    for e in range(15):
        a(f"""
        v_subrev_u32 v6, {e}, v5
        v_max_i32 v7, 0, v6
        v_cvt_f32_u32 v7, v7
        v_bfe_u32 v8, v7, 16, 1
        v_add3_u32 v7, v7, v8, s56
        v_and_b32 v7, 0xffff0000, v7
        v_cvt_u32_f32 v8, v7
        v_lshrrev_b32 v7, 23, v7
        v_subrev_u32 v7, 134, v7
        v_max_i32 v7, 0, v7
        v_lshrrev_b32 v8, v7, v8
        v_lshl_add_u32 v8, v7, 8, v8
        v_lshlrev_b32 v8, 2, v8
        v_add_u32 v8, {KT}, v8
        v_cmp_gt_i32 vcc, 0, v6
        s_nop 1
        v_cndmask_b32 v8, v8, v9, vcc
        ds_read_b32 v{40+e}, v8
        """)
    a("s_waitcnt lgkmcnt(0)")
    def packlists(vb, PE, PE2, PO, PO2):
        for k in range(7):
            a(f"v_cvt_pk_bf16_f32 v{PE+k}, v{vb+2*k}, v{vb+2*k+1}")
            a(f"v_cvt_pk_bf16_f32 v{PO+k}, v{vb+2*k+1}, v{vb+2*k+2}")
        for k in range(7):
            a(f"v_mov_b32 v{PE2+k}, v{PE+k}")
            a(f"v_mov_b32 v{PO2+k}, v{PO+k}")
    def writes(arr, PE, PE2, PO, PO2):
        for c in range(8):
            m = c // 2
            if c % 2 == 0:
                b = PE if m % 2 == 0 else PE2
            else:
                b = PO if m % 2 == 0 else PO2
            a(f"ds_write_b128 v5, v[{b+m}:{b+m+3}] offset:{arr*ARR + c*CSTR}")
    a("v_lshlrev_b32 v5, 4, v0")
    packlists(40, 60, 69, 78, 87)
    writes(0, 60, 69, 78, 87)
    for k in range(7):
        a(f"v_lshlrev_b32 v6, 16, v{60+k}")
        a(f"v_and_b32 v7, 0xffff0000, v{60+k}")
        a(f"v_sub_f32 v{40+2*k}, v{40+2*k}, v6")
        a(f"v_sub_f32 v{40+2*k+1}, v{40+2*k+1}, v7")
    a("v_and_b32 v7, 0xffff0000, v84")
    a("v_sub_f32 v54, v54, v7")
    a("s_waitcnt lgkmcnt(0)")
    packlists(40, 60, 69, 78, 87)
    writes(1, 60, 69, 78, 87)
    a(f"""
    v_mov_b32 v60, 0
    v_mov_b32 v61, 0
    v_mov_b32 v62, 0
    v_mov_b32 v63, 0
    v_mul_u32_u24 v6, {CSTR}, v0
    v_cmp_gt_u32 vcc, 16, v0
    s_and_saveexec_b64 s[54:55], vcc
    ds_write_b128 v6, v[60:63] offset:4096
    s_mov_b64 exec, s[54:55]
    s_waitcnt vmcnt(0) lgkmcnt(0)
    s_barrier
    v_sub_u32 v5, 7, v3
    v_and_b32 v5, 7, v5
    v_lshrrev_b32 v6, 1, v4
    v_lshlrev_b32 v6, 4, v6
    v_and_b32 v7, 1, v4
    v_lshlrev_b32 v7, 3, v7
    v_sub_u32 v7, v7, v6
    v_sub_u32 v7, v7, v3
    v_sub_u32 v7, v7, v5
    s_lshl_b32 s19, s18, 5
    v_subrev_u32 v7, s19, v7
    v_add_u32 v7, 127, v7
    v_lshlrev_b32 v7, 1, v7
    v_mul_u32_u24 v5, {CSTR}, v5
    v_add_u32 v5, v5, v7
    """)
    for r in range(32):
        a(f"v_mov_b32 v{64+r}, 0")
    def aread(m, b):
        a(f"ds_read_b128 v[{b}:{b+3}], v5 offset:{256*(15-m)}")
        a(f"ds_read_b128 v[{b+4}:{b+7}], v5 offset:{ARR + 256*(15-m)}")
    aread(0, 40)
    for m in range(16):
        b = 40 if m % 2 == 0 else 48
        if m < 15:
            aread(m+1, 48 if m % 2 == 0 else 40)
            a("s_waitcnt lgkmcnt(2)")
        else:
            a("s_waitcnt lgkmcnt(0)")
        jmin = m // 2
        for h in range(2):
            for jn in range(jmin, 8):
                i = 2*jn - m + 1
                c = 64 + 4*jn
                a(f"v_mfma_f32_16x16x32_bf16 v[{c}:{c+3}], v[{b+4*h}:{b+4*h+3}], v[{128+4*i}:{131+4*i}], v[{c}:{c+3}]")
    a("s_nop 15")
    a("s_barrier")
    a(f"""
    v_lshlrev_b32 v5, 6, v3
    v_lshl_add_u32 v5, v4, 4, v5
    s_lshl_b32 s19, s18, 13
    v_add_u32 v5, s19, v5
    """)
    for jn in range(8):
        a(f"ds_write_b128 v5, v[{64+4*jn}:{67+4*jn}] offset:{jn*1024}")
    a("""
    s_waitcnt lgkmcnt(0)
    s_barrier
    v_lshlrev_b32 v5, 5, v0
    """)
    for w in range(4):
        a(f"ds_read_b128 v[{40+8*w}:{43+8*w}], v5 offset:{w*8192}")
        a(f"ds_read_b128 v[{44+8*w}:{47+8*w}], v5 offset:{w*8192+16}")
    a("s_waitcnt lgkmcnt(0)")
    for r in range(8):
        a(f"v_add_f32 v{40+r}, v{40+r}, v{48+r}")
        a(f"v_add_f32 v{56+r}, v{56+r}, v{64+r}")
        a(f"v_add_f32 v{40+r}, v{40+r}, v{56+r}")
    for k in range(4):
        x, y = 40+2*k, 41+2*k
        rne_pair(a, x, y, 72)
        a(f"v_lshlrev_b32 v73, 16, v{192+k}")
        a(f"v_and_b32 v74, 0xffff0000, v{192+k}")
        a("v_mul_f32 v73, v73, v27")
        a("v_mul_f32 v74, v74, v27")
        rne_pair(a, 73, 74, 72)
        a(f"v_add_f32 v{x}, v{x}, v73")
        a(f"v_add_f32 v{y}, v{y}, v74")
        a(f"v_cvt_pk_bf16_f32 v{76+k}, v{x}, v{y}")
    a("v_lshlrev_b32 v5, 4, v0")
    a("buffer_store_dwordx4 v[76:79], v5, s[48:51], 0 offen")
    a.label("L_kc_done")
    a("s_endpgm")
    kernel_desc(a, name, 200)
    return (name, 576, 256, P2K + 64)
```

```python
import sys
from common import *
from k0 import k0
from k1 import k1
from k2 import k2
from kc import kc
HEAD = open('gated_mix__ssm_conv_s4d__mixer_token_mlp__prompt.s.ref').read().split("; Override launch geometry")[0]
a = Asm()
ks = [k0(a), kc(a), k1(a), k2(a)]
out = HEAD
for (n, g, b, l) in ks:
    out += f"; @launch kernel={n} grid=({g},1,1) block=({b},1,1) lds={l}\n"
out += '.amdgcn_target "amdgcn-amd-amdhsa--gfx950"\n' + a.text()
open('gated_mix__ssm_conv_s4d__mixer_token_mlp__prompt.s', 'w').write(out)
print("written", len(out))
```

```python
from common import *
HS1 = 4096; GS1 = 9216
def k1_body(a, prio=2):
    SA, SB = 3, 2
    A_SL, B_SL, B0 = 16384, 12288, 0xC000
    n = 32
    a(f"""
    s_setprio {prio}
    s_load_dwordx2 s[4:5], s[0:1], 64
    s_load_dwordx2 s[6:7], s[0:1], 72
    s_load_dwordx2 s[10:11], s[0:1], 120
    s_and_b32 s12, s2, 7
    s_lshr_b32 s13, s2, 3
    s_mul_i32 s12, s12, 27
    s_add_u32 s12, s12, s13
    s_mul_hi_u32 s13, s12, 0x2aaaaaab
    s_mul_i32 s14, s13, 6
    s_sub_u32 s14, s12, s14
    v_lshrrev_b32 v1, 6, v0
    v_and_b32 v2, 63, v0
    s_nop 0
    v_readfirstlane_b32 s15, v1
    s_waitcnt lgkmcnt(0)
    """)
    srd(a, 16, 4, 18874368)
    srd(a, 20, 10, 576*HS1, WS_HT)
    srd(a, 24, 6, 9216)
    srd(a, 28, 10, 576*GS1, WS_G)
    a(f"""
    v_lshrrev_b32 v3, 4, v2
    v_and_b32 v4, 15, v2
    v_lshrrev_b32 v5, 2, v4
    v_xor_b32 v5, v5, v3
    v_lshlrev_b32 v5, 6, v5
    v_and_b32 v6, 3, v2
    v_lshl_add_u32 v5, v6, 4, v5
    v_mul_u32_u24 v6, 0x2400, v3
    v_add_u32 v200, v5, v6
    v_lshrrev_b32 v5, 3, v2
    v_and_b32 v6, 7, v2
    v_xor_b32 v7, v6, v3
    v_lshlrev_b32 v7, 4, v7
    v_mul_u32_u24 v5, {HS1}, v5
    v_add_u32 v201, v5, v7
    v_xor_b32 v202, 64, v201
    s_lshl_b32 s34, s13, 8
    s_mul_i32 s35, s15, {16*9216}
    s_add_u32 s34, s34, s35
    s_mul_i32 s35, s14, 96
    s_mul_i32 s36, s15, 24
    s_add_u32 s35, s35, s36
    s_mul_i32 s35, s35, {HS1}
    s_lshl_b32 s36, s15, 12
    s_mul_i32 s37, s15, 3072
    s_add_u32 s37, s37, {B0}
    s_lshr_b32 s38, s15, 1
    s_and_b32 s39, s15, 1
    v_lshrrev_b32 v5, 5, v2
    v_lshrrev_b32 v6, 2, v4
    v_lshl_add_u32 v7, v5, 3, v6
    v_lshlrev_b32 v7, 8, v7
    v_bfe_u32 v8, v2, 4, 1
    v_lshlrev_b32 v8, 5, v8
    v_and_b32 v9, 3, v2
    v_lshl_add_u32 v8, v9, 3, v8
    v_add_u32 v7, v7, v8
    s_lshl_b32 s41, s39, 13
    v_add_u32 v7, s41, v7
    s_lshl_b32 s41, s38, 1
    v_xor_b32 v8, s41, v6
    v_lshl_add_u32 v204, v8, 6, v7
    s_add_u32 s41, s41, 1
    v_xor_b32 v8, s41, v6
    v_lshl_add_u32 v205, v8, 6, v7
    v_and_b32 v8, 31, v2
    v_bfe_u32 v9, v8, 1, 3
    s_lshl_b32 s41, s39, 2
    v_add_u32 v10, s41, v5
    v_xor_b32 v11, v10, v9
    v_lshlrev_b32 v11, 4, v11
    v_lshl_add_u32 v206, v8, 7, v11
    v_add_u32 v10, 2, v10
    v_xor_b32 v11, v10, v9
    v_lshlrev_b32 v11, 4, v11
    v_lshl_add_u32 v207, v8, 7, v11
    v_add_u32 v206, {B0}, v206
    v_add_u32 v207, {B0}, v207
    s_lshl_b32 s41, s13, 8
    s_lshl_b32 s42, s15, 6
    s_add_u32 s41, s41, s42
    v_lshlrev_b32 v12, 3, v5
    v_add_u32 v12, s41, v12
    v_mov_b32 v222, v12
    """)
    for g in range(4):
        a(f"buffer_load_dwordx2 v[{212+2*g}:{213+2*g}], v12, s[24:27], 0 offen offset:{16*g}")
    a("""
    v_mov_b32 v220, v201
    v_mov_b32 v221, v202
    s_and_b32 s41, s15, 1
    s_cmp_eq_u32 s41, 0
    s_cbranch_scc1 L_g1_par
    v_mov_b32 v220, v202
    v_mov_b32 v221, v201
    """)
    a.label("L_g1_par")
    a("""
    s_mul_i32 s68, s14, 5
    s_mov_b32 s71, s68
    s_mul_i32 s69, s68, 589824
    s_add_u32 s34, s34, s69
    s_lshl_b32 s69, s68, 7
    s_add_u32 s35, s35, s69
    """)
    def dmaA(st):
        L = []
        for j in range(4):
            L.append([f"s_add_u32 m0, s36, {(st % SA)*A_SL + j*1024}", f"s_add_u32 s42, s34, {4*j*9216}",
                      "buffer_load_dwordx4 v200, s[16:19], s42 offen lds"])
        L.append(["s_add_u32 s34, s34, 589824", "s_add_u32 s68, s68, 1", "s_cmp_eq_u32 s68, 32",
                  "s_cselect_b32 s69, 18874368, 0", "s_cselect_b32 s68, 0, s68", "s_sub_u32 s34, s34, s69"])
        return L
    def dmaB(st):
        L = []
        for jj in range(3):
            L.append([f"s_add_u32 m0, s37, {(st % SB)*B_SL + jj*1024}", f"s_add_u32 s42, s35, {8*jj*HS1}",
                      f"buffer_load_dwordx4 v{220 + (jj & 1)}, s[20:23], s42 offen lds"])
        L.append(["s_add_u32 s35, s35, 128", "s_add_u32 s71, s71, 1", "s_cmp_eq_u32 s71, 32",
                  "s_cselect_b32 s70, 4096, 0", "s_cselect_b32 s71, 0, s71", "s_sub_u32 s35, s35, s70"])
        return L
    def emit(L):
        for grp in L:
            for x in grp: a(x)
    def reads(st, half, base):
        oa = (st % SA)*A_SL; ob = (st % SB)*B_SL
        for t in range(2):
            a(f"ds_read_b64_tr_b16 v[{base+4*t}:{base+4*t+1}], v{204+t} offset:{oa + half*4096}")
            a(f"ds_read_b64_tr_b16 v[{base+4*t+2}:{base+4*t+3}], v{204+t} offset:{oa + half*4096 + 1024}")
        for d in range(3):
            a(f"ds_read_b128 v[{base+8+4*d}:{base+8+4*d+3}], v{206+half} offset:{ob + d*4096}")
    def mf(base):
        out = []
        for t in range(2):
            for d in range(3):
                c = 100 + 16*(3*t + d)
                out.append(f"v_mfma_f32_32x32x16_bf16 v[{c}:{c+15}], v[{base+4*t}:{base+4*t+3}], v[{base+8+4*d}:{base+8+4*d+3}], v[{c}:{c+15}]")
        return out
    fa, fb = 10, 30
    def tail_part(i):
        reads(i+1, 0, fa)
        D = []
        if i+2 < n: D += dmaB(i+2)
        if i+3 < n: D += dmaA(i+3)
        M = mf(fb) if i >= 0 else []
        if i >= 0: a("s_waitcnt lgkmcnt(7)")
        k = 0
        for mi, m in enumerate(M):
            a(m)
            if mi < 5:
                for _ in range(2):
                    if k < len(D): emit([D[k]]); k += 1
        emit(D[k:])
    def step(i):
        reads(i, 1, fb)
        a("s_waitcnt lgkmcnt(7)")
        for m in mf(fa): a(m)
        if i+1 < n:
            a(f"s_waitcnt vmcnt({4 if i+2 < n else 0}) lgkmcnt(0)")
            a("s_barrier")
            tail_part(i)
        else:
            a("s_waitcnt lgkmcnt(0)")
            for m in mf(fb): a(m)
    emit(dmaA(0)); emit(dmaB(0)); emit(dmaA(1))
    for r in range(96):
        a(f"v_mov_b32 v{r+100}, 0")
    a("s_waitcnt vmcnt(4)")
    a("s_barrier")
    tail_part(-1)
    a("s_mov_b32 s40, 4")
    a.label("L_g1_loop")
    for i in range(6): step(i)
    a("s_sub_u32 s40, s40, 1")
    a("s_cmp_lg_u32 s40, 0")
    a("s_cbranch_scc1 L_g1_loop")
    for i in range(24, 32): step(i)
    a("s_nop 15")
    a("s_barrier")
    a(f"""
    v_lshlrev_b32 v3, 4, v2
    s_mul_i32 s41, s15, 12288
    v_add_u32 v3, s41, v3
    s_xor_b32 s42, s15, 1
    s_mul_i32 s42, s42, 12288
    v_lshlrev_b32 v4, 4, v2
    v_add_u32 v4, s42, v4
    s_cmp_eq_u32 s39, 0
    s_cbranch_scc0 L_g1_e1
    """)
    for g in range(12):
        a(f"ds_write_b128 v3, v[{148+4*g}:{151+4*g}] offset:{g*1024}")
    a("s_branch L_g1_e2")
    a.label("L_g1_e1")
    for g in range(12):
        a(f"ds_write_b128 v3, v[{100+4*g}:{103+4*g}] offset:{g*1024}")
    a("s_waitcnt lgkmcnt(0)")
    for r in range(48):
        a(f"v_mov_b32 v{100+r}, v{148+r}")
    a.label("L_g1_e2")
    a("s_waitcnt lgkmcnt(0)")
    a("s_barrier")
    for g in range(12):
        a(f"ds_read_b128 v[{148+4*g}:{151+4*g}], v4 offset:{g*1024}")
    a(f"""
    v_and_b32 v8, 31, v2
    s_mul_i32 s41, s14, 96
    v_add_u32 v8, s41, v8
    v_mul_u32_u24 v8, {GS1}, v8
    v_add_u32 v8, v8, v222
    s_mov_b32 s44, 0x3dd2d3e8
    s_mov_b32 s45, 0x40135761
    v_mov_b32 v9, s45
    s_waitcnt vmcnt(0) lgkmcnt(0)
    """)
    for g in range(4):
        a(f"v_lshlrev_b32 v{10+4*g}, 16, v{212+2*g}")
        a(f"v_and_b32 v{11+4*g}, 0xffff0000, v{212+2*g}")
        a(f"v_lshlrev_b32 v{12+4*g}, 16, v{213+2*g}")
        a(f"v_and_b32 v{13+4*g}, 0xffff0000, v{213+2*g}")
    for d in range(3):
        for g in range(4):
            b = 100 + 16*d + 4*g
            for r in range(4):
                a(f"v_add_f32 v{b+r}, v{b+r}, v{b+48+r}")
            rne_pair(a, b, b+1, 30)
            rne_pair(a, b+2, b+3, 31)
            for r in range(4):
                a(f"v_add_f32 v{b+r}, v{b+r}, v{10+4*g+r}")
            rne_pair(a, b, b+1, 30)
            rne_pair(a, b+2, b+3, 31)
            for r in range(4):
                a(f"v_mul_f32 v{32+r}, v{b+r}, v{b+r}")
            for r in range(4):
                a(f"v_fma_f32 v{32+r}, v{32+r}, s44, v9")
            for r in range(4):
                a(f"v_mul_f32 v{32+r}, v{32+r}, v{b+r}")
            for r in range(4):
                a(f"v_exp_f32 v{32+r}, v{32+r}")
            for r in range(4):
                a(f"v_add_f32 v{32+r}, 1.0, v{32+r}")
            for r in range(4):
                a(f"v_rcp_f32 v{32+r}, v{32+r}")
            a("s_nop 0")
            for r in range(4):
                a(f"v_fma_f32 v{b+r}, -v{b+r}, v{32+r}, v{b+r}")
            a(f"v_cvt_pk_bf16_f32 v{36}, v{b}, v{b+1}")
            a(f"v_cvt_pk_bf16_f32 v{37}, v{b+2}, v{b+3}")
            a(f"s_mov_b32 s46, {d*32*GS1}")
            a(f"buffer_store_dwordx2 v[36:37], v8, s[28:31], s46 offen offset:{16*g}")
    a("s_endpgm")
```

```python
from common import *

LOG2E = 0x3fb8aa3b
INV2PI = 0x3e22f983
CSTR = 4160
ARR = 8*CSTR
KT = 2*ARR
P2K = KT + 1280*4

def kc(a, merged=False):
    name = "ssm_kernel"
    if not merged: kernel_head(a, name)
    a(f"""
    s_cmp_ge_u32 s2, 576
    s_cbranch_scc1 L_kc_done
    s_load_dwordx4 s[4:7], s[0:1], 8
    s_load_dwordx4 s[8:11], s[0:1], 24
    s_load_dwordx4 s[12:15], s[0:1], 40
    s_load_dwordx2 s[16:17], s[0:1], 120
    v_lshrrev_b32 v1, 6, v0
    v_and_b32 v2, 63, v0
    v_and_b32 v3, 15, v0
    v_bfe_u32 v4, v0, 4, 2
    s_nop 0
    v_readfirstlane_b32 s18, v1
    s_waitcnt lgkmcnt(0)
    """)
    srd(a, 20, 4, 147456)
    srd(a, 24, 6, 147456)
    srd(a, 28, 8, 147456)
    srd(a, 32, 10, 147456)
    srd(a, 36, 12, 1152)
    srd(a, 40, 14, 1152)
    a(f"""
    s_lshl_b32 s19, s2, 12
    s_add_u32 s44, s16, s19
    s_addc_u32 s45, s17, 0
    s_add_u32 s48, s44, {hex(WS_AT)}
    s_addc_u32 s49, s45, 0
    s_add_u32 s44, s44, {hex(WS_UT)}
    s_addc_u32 s45, s45, 0
    s_mov_b32 s46, 4096
    s_mov_b32 s47, 0x00020000
    s_mov_b32 s50, 4096
    s_mov_b32 s51, 0x00020000
    s_lshl_b32 s19, s2, 8
    s_lshl_b32 s52, s18, 6
    s_add_u32 s19, s19, s52
    v_lshlrev_b32 v5, 4, v4
    v_add_u32 v5, s19, v5
    buffer_load_dwordx4 v[10:13], v5, s[20:23], 0 offen
    buffer_load_dwordx4 v[14:17], v5, s[24:27], 0 offen
    buffer_load_dwordx4 v[18:21], v5, s[28:31], 0 offen
    buffer_load_dwordx4 v[22:25], v5, s[32:35], 0 offen
    s_lshl_b32 s19, s2, 1
    v_mov_b32 v6, s19
    buffer_load_ushort v26, v6, s[36:39], 0 offen
    buffer_load_ushort v27, v6, s[40:43], 0 offen
    ; B frags
    v_lshlrev_b32 v6, 4, v3
    v_lshrrev_b32 v7, 1, v4
    v_lshlrev_b32 v7, 4, v7
    v_sub_u32 v6, v6, v7
    v_and_b32 v7, 1, v4
    v_lshl_add_u32 v6, v7, 3, v6
    v_lshlrev_b32 v6, 1, v6
    s_lshl_b32 s19, s18, 6
    v_subrev_u32 v6, s19, v6
    v_mov_b32 v8, 0x7ffffff0
    """)
    for i in range(16):
        a(f"v_add_u32 v7, {64*(4*i-4) & 0xffffffff}, v6")
        if i < 3:
            a("v_cmp_gt_i32 vcc, 0, v7")
            a("s_nop 1")
            a("v_cndmask_b32 v7, v7, v8, vcc")
        a(f"buffer_load_dwordx4 v[{128+4*i}:{131+4*i}], v7, s[44:47], 0 offen")
    a("v_lshlrev_b32 v7, 4, v0")
    a("buffer_load_dwordx4 v[192:195], v7, s[44:47], 0 offen")
    a("s_waitcnt vmcnt(17)")
    a(f"""
    v_lshlrev_b32 v26, 16, v26
    v_lshlrev_b32 v27, 16, v27
    v_mul_f32 v26, {hex(LOG2E)}, v26
    v_exp_f32 v26, v26
    s_nop 0
    v_mov_b32 v28, v26
    """)
    rne_pair(a, 26, 28, 29)
    a(f"""
    v_cvt_f32_u32 v30, v3
    v_mul_f32 v31, 16.0, v30
    v_add_f32 v32, v26, v26
    """)
    for r in range(16):
        a(f"v_mov_b32 v{100+r}, 0")
    a("v_mov_b32 v116, 0")
    for e in range(8):
        src = lambda base: base + e//2
        def ext(dst, base):
            if e % 2 == 0:
                a(f"v_lshlrev_b32 v{dst}, 16, v{src(base)}")
            else:
                a(f"v_and_b32 v{dst}, 0xffff0000, v{src(base)}")
        ext(40, 10); ext(41, 14); ext(42, 18); ext(43, 22)
        a(f"""
        v_mul_f32 v40, {hex(LOG2E)}, v40
        v_exp_f32 v40, v40
        v_mul_f32 v41, v41, v26
        v_mov_b32 v44, v40
        """)
        rne_pair(a, 40, 44, 45)
        a(f"""
        v_mul_f32 v40, v40, v26
        v_mul_f32 v40, {hex(LOG2E ^ 0x80000000)}, v40
        v_mul_f32 v41, {hex(INV2PI)}, v41
        v_mul_f32 v42, v42, v32
        v_mul_f32 v43, v43, v32
        v_mul_f32 v44, v40, v30
        v_mul_f32 v45, v41, v30
        v_mul_f32 v46, v40, v31
        v_mul_f32 v47, v41, v31
        v_exp_f32 v44, v44
        v_fract_f32 v45, v45
        v_exp_f32 v46, v46
        v_fract_f32 v47, v47
        v_cos_f32 v48, v45
        v_sin_f32 v49, v45
        v_cos_f32 v50, v47
        v_sin_f32 v51, v47
        s_nop 0
        v_mul_f32 v48, v48, v44
        v_mul_f32 v49, v49, v44
        v_mul_f32 v50, v50, v46
        v_mul_f32 v51, v51, v46
        """)
        for s in range(4):
            a(f"""
            v_mul_f32 v52, v50, v42
            v_fma_f32 v52, -v51, v43, v52
            v_mul_f32 v53, v50, v43
            v_fma_f32 v53, v51, v42, v53
            v_sub_f32 v53, 0, v53
            """)
            a("s_nop 1")
            c = 100 + 4*s
            a(f"v_mfma_f32_16x16x4_f32 v[{c}:{c+3}], v52, v48, v[{c}:{c+3}]")
            a(f"v_mfma_f32_16x16x4_f32 v[{c}:{c+3}], v53, v49, v[{c}:{c+3}]")
            a(f"""
            v_mul_f32 v54, v48, v48
            v_fma_f32 v54, -v49, v49, v54
            v_mul_f32 v55, v48, v49
            v_add_f32 v49, v55, v55
            v_mov_b32 v48, v54
            v_mul_f32 v54, v50, v50
            v_fma_f32 v54, -v51, v51, v54
            v_mul_f32 v55, v50, v51
            v_add_f32 v51, v55, v55
            v_mov_b32 v50, v54
            """)
        a("""
        v_mul_f32 v52, v50, v42
        v_fma_f32 v52, -v51, v43, v52
        v_add_f32 v116, v116, v52
        """)
    a("s_nop 15")
    a(f"""
    s_lshl_b32 s19, s18, 12
    v_lshlrev_b32 v5, 8, v4
    v_lshl_add_u32 v5, v3, 2, v5
    v_add_u32 v5, s19, v5
    """)
    for s in range(4):
        for r in range(4):
            a(f"ds_write_b32 v5, v{100+4*s+r} offset:{s*1024 + r*64}")
    a(f"""
    s_lshl_b32 s19, s18, 4
    v_lshlrev_b32 v6, 2, v4
    v_add_u32 v6, s19, v6
    v_cmp_eq_u32 vcc, 8, v3
    s_and_saveexec_b64 s[54:55], vcc
    v_add_u32 v6, {P2K}, v6
    ds_write_b32 v6, v116
    s_mov_b64 exec, s[54:55]
    s_waitcnt lgkmcnt(0)
    s_barrier
    v_lshlrev_b32 v5, 4, v0
    ds_read_b128 v[40:43], v5
    ds_read_b128 v[44:47], v5 offset:4096
    ds_read_b128 v[48:51], v5 offset:8192
    ds_read_b128 v[52:55], v5 offset:12288
    v_mov_b32 v6, {P2K}
    ds_read_b128 v[56:59], v6
    ds_read_b128 v[60:63], v6 offset:16
    ds_read_b128 v[64:67], v6 offset:32
    ds_read_b128 v[68:71], v6 offset:48
    s_waitcnt lgkmcnt(0)
    """)
    for r in range(4):
        a(f"v_add_f32 v{40+r}, v{40+r}, v{44+r}")
        a(f"v_add_f32 v{48+r}, v{48+r}, v{52+r}")
        a(f"v_add_f32 v{40+r}, v{40+r}, v{48+r}")
    a("v_add_f32 v56, v56, v57")
    for r in range(58, 72):
        a(f"v_add_f32 v56, v56, v{r}")
    a(f"""
    v_add_u32 v5, {KT}, v5
    ds_write_b128 v5, v[40:43]
    v_mov_b32 v57, 0
    v_mov_b32 v6, {KT + 1152*4}
    v_cmp_eq_u32 vcc, 0, v0
    s_and_saveexec_b64 s[54:55], vcc
    ds_write_b32 v6, v56
    ds_write_b32 v6, v57 offset:4
    s_mov_b64 exec, s[54:55]
    s_waitcnt lgkmcnt(0)
    s_barrier
    """)
    a(f"""
    v_lshlrev_b32 v5, 3, v0
    v_sub_u32 v5, 2047, v5
    v_mov_b32 v9, {KT + 1153*4}
    s_mov_b32 s56, 0x7fff
    """)
    for e in range(15):
        a(f"""
        v_subrev_u32 v6, {e}, v5
        v_max_i32 v7, 0, v6
        v_cvt_f32_u32 v7, v7
        v_bfe_u32 v8, v7, 16, 1
        v_add3_u32 v7, v7, v8, s56
        v_and_b32 v7, 0xffff0000, v7
        v_cvt_u32_f32 v8, v7
        v_lshrrev_b32 v7, 23, v7
        v_subrev_u32 v7, 134, v7
        v_max_i32 v7, 0, v7
        v_lshrrev_b32 v8, v7, v8
        v_lshl_add_u32 v8, v7, 8, v8
        v_lshlrev_b32 v8, 2, v8
        v_add_u32 v8, {KT}, v8
        v_cmp_gt_i32 vcc, 0, v6
        s_nop 1
        v_cndmask_b32 v8, v8, v9, vcc
        ds_read_b32 v{40+e}, v8
        """)
    a("s_waitcnt lgkmcnt(0)")
    def packlists(vb, PE, PE2, PO, PO2):
        for k in range(7):
            a(f"v_cvt_pk_bf16_f32 v{PE+k}, v{vb+2*k}, v{vb+2*k+1}")
            a(f"v_cvt_pk_bf16_f32 v{PO+k}, v{vb+2*k+1}, v{vb+2*k+2}")
        for k in range(7):
            a(f"v_mov_b32 v{PE2+k}, v{PE+k}")
            a(f"v_mov_b32 v{PO2+k}, v{PO+k}")
    def writes(arr, PE, PE2, PO, PO2):
        for c in range(8):
            m = c // 2
            if c % 2 == 0:
                b = PE if m % 2 == 0 else PE2
            else:
                b = PO if m % 2 == 0 else PO2
            a(f"ds_write_b128 v5, v[{b+m}:{b+m+3}] offset:{arr*ARR + c*CSTR}")
    a("v_lshlrev_b32 v5, 4, v0")
    packlists(40, 60, 69, 78, 87)
    writes(0, 60, 69, 78, 87)
    for k in range(7):
        a(f"v_lshlrev_b32 v6, 16, v{60+k}")
        a(f"v_and_b32 v7, 0xffff0000, v{60+k}")
        a(f"v_sub_f32 v{40+2*k}, v{40+2*k}, v6")
        a(f"v_sub_f32 v{40+2*k+1}, v{40+2*k+1}, v7")
    a("v_and_b32 v7, 0xffff0000, v84")
    a("v_sub_f32 v54, v54, v7")
    a("s_waitcnt lgkmcnt(0)")
    packlists(40, 60, 69, 78, 87)
    writes(1, 60, 69, 78, 87)
    a(f"""
    v_mov_b32 v60, 0
    v_mov_b32 v61, 0
    v_mov_b32 v62, 0
    v_mov_b32 v63, 0
    v_mul_u32_u24 v6, {CSTR}, v0
    v_cmp_gt_u32 vcc, 16, v0
    s_and_saveexec_b64 s[54:55], vcc
    ds_write_b128 v6, v[60:63] offset:4096
    s_mov_b64 exec, s[54:55]
    s_waitcnt vmcnt(0) lgkmcnt(0)
    s_barrier
    v_sub_u32 v5, 7, v3
    v_and_b32 v5, 7, v5
    v_lshrrev_b32 v6, 1, v4
    v_lshlrev_b32 v6, 4, v6
    v_and_b32 v7, 1, v4
    v_lshlrev_b32 v7, 3, v7
    v_sub_u32 v7, v7, v6
    v_sub_u32 v7, v7, v3
    v_sub_u32 v7, v7, v5
    s_lshl_b32 s19, s18, 5
    v_subrev_u32 v7, s19, v7
    v_add_u32 v7, 127, v7
    v_lshlrev_b32 v7, 1, v7
    v_mul_u32_u24 v5, {CSTR}, v5
    v_add_u32 v5, v5, v7
    """)
    for r in range(32):
        a(f"v_mov_b32 v{64+r}, 0")
    def aread(m, b):
        a(f"ds_read_b128 v[{b}:{b+3}], v5 offset:{256*(15-m)}")
        a(f"ds_read_b128 v[{b+4}:{b+7}], v5 offset:{ARR + 256*(15-m)}")
    aread(0, 40)
    for m in range(16):
        b = 40 if m % 2 == 0 else 48
        if m < 15:
            aread(m+1, 48 if m % 2 == 0 else 40)
            a("s_waitcnt lgkmcnt(2)")
        else:
            a("s_waitcnt lgkmcnt(0)")
        jmin = m // 2
        for h in range(2):
            for jn in range(jmin, 8):
                i = 2*jn - m + 1
                c = 64 + 4*jn
                a(f"v_mfma_f32_16x16x32_bf16 v[{c}:{c+3}], v[{b+4*h}:{b+4*h+3}], v[{128+4*i}:{131+4*i}], v[{c}:{c+3}]")
    a("s_nop 15")
    a("s_barrier")
    a(f"""
    v_lshlrev_b32 v5, 6, v3
    v_lshl_add_u32 v5, v4, 4, v5
    s_lshl_b32 s19, s18, 13
    v_add_u32 v5, s19, v5
    """)
    for jn in range(8):
        a(f"ds_write_b128 v5, v[{64+4*jn}:{67+4*jn}] offset:{jn*1024}")
    a("""
    s_waitcnt lgkmcnt(0)
    s_barrier
    v_lshlrev_b32 v5, 5, v0
    """)
    for w in range(4):
        a(f"ds_read_b128 v[{40+8*w}:{43+8*w}], v5 offset:{w*8192}")
        a(f"ds_read_b128 v[{44+8*w}:{47+8*w}], v5 offset:{w*8192+16}")
    a("s_waitcnt lgkmcnt(0)")
    for r in range(8):
        a(f"v_add_f32 v{40+r}, v{40+r}, v{48+r}")
        a(f"v_add_f32 v{56+r}, v{56+r}, v{64+r}")
        a(f"v_add_f32 v{40+r}, v{40+r}, v{56+r}")
    for k in range(4):
        x, y = 40+2*k, 41+2*k
        rne_pair(a, x, y, 72)
        a(f"v_lshlrev_b32 v73, 16, v{192+k}")
        a(f"v_and_b32 v74, 0xffff0000, v{192+k}")
        a("v_mul_f32 v73, v73, v27")
        a("v_mul_f32 v74, v74, v27")
        rne_pair(a, 73, 74, 72)
        a(f"v_add_f32 v{x}, v{x}, v73")
        a(f"v_add_f32 v{y}, v{y}, v74")
        a(f"v_cvt_pk_bf16_f32 v{76+k}, v{x}, v{y}")
    a("v_lshlrev_b32 v5, 4, v0")
    a("buffer_store_dwordx4 v[76:79], v5, s[48:51], 0 offen")
    a.label("L_kc_done")
    a("s_endpgm")
    if merged: return
    kernel_desc(a, name, 200)
    return (name, 576, 256, P2K + 64)
```

```python
import sys, os
from common import *
from kc import kc
from k1d import k1_body
base = open(sys.argv[1]).read()
head, rest = base.split('.amdgcn_target "amdgcn-amd-amdhsa--gfx950"\n', 1)
parts = rest.split(".text\n")
assert len(parts) == 5, len(parts)
prep, ssm, g1, g2 = parts[1:]
a = Asm()
kernel_head(a, "mix_kernel")
a("s_cmp_ge_u32 s2, 216")
a("s_cbranch_scc1 L_mix_ssm")
k1_body(a, int(os.environ.get("PRIO", 2)))
a.label("L_mix_ssm")
a("s_sub_u32 s2, s2, 216")
kc(a, merged=True)
kernel_desc(a, "mix_kernel", 232)
hl = [l for l in head.split("\n") if not l.startswith("; @launch")]
head2 = "\n".join(hl).rstrip("\n") + "\n"
head2 += "; @launch kernel=prep_kernel grid=(256,1,1) block=(256,1,1) lds=18432\n"
head2 += "; @launch kernel=mix_kernel grid=(792,1,1) block=(256,1,1) lds=73728\n"
head2 += "; @launch kernel=gemm2_kernel grid=(192,1,1) block=(256,1,1) lds=163840\n"
out = head2 + '.amdgcn_target "amdgcn-amd-amdhsa--gfx950"\n' + ".text\n" + prep + a.text() + ".text\n" + g2
open(sys.argv[2], "w").write(out)
print(len(out))
```

```python
class Asm:
    def __init__(self):
        self.L = []
    def __call__(self, s):
        for ln in s.strip("\n").split("\n"):
            ln = ln.strip()
            if ln:
                self.L.append("    " + ln)
    def label(self, s):
        self.L.append(s + ":")
    def raw(self, s):
        self.L.append(s)
    def text(self):
        return "\n".join(self.L) + "\n"

WS_HT   = 0x000000
WS_UT   = 0x240000
WS_G    = 0x480000
WS_AT   = 0x990000
WS_GATE = 0xBD0000
import os
HS = int(os.environ.get('HS', 4352))
GS = int(os.environ.get('GS', 9472))

def kernel_head(a, name):
    a.raw(".text")
    a.raw(f".globl {name}")
    a.raw(".p2align 8")
    a.raw(f".type {name},@function")
    a.label(name)

def kernel_desc(a, name, vgpr, sgpr=102, accum=None):
    acc = accum if accum is not None else ((vgpr + 3) // 4) * 4
    a.raw('.section .rodata,"a"')
    a.raw(".p2align 6")
    a.raw(f".amdhsa_kernel {name}")
    a.raw(f"  .amdhsa_next_free_vgpr {vgpr}")
    a.raw(f"  .amdhsa_next_free_sgpr {sgpr}")
    a.raw(f"  .amdhsa_accum_offset {acc}")
    a.raw("  .amdhsa_group_segment_fixed_size 0")
    a.raw("  .amdhsa_kernarg_size 128")
    a.raw("  .amdhsa_user_sgpr_count 2")
    a.raw("  .amdhsa_user_sgpr_kernarg_segment_ptr 1")
    a.raw("  .amdhsa_system_sgpr_workgroup_id_x 1")
    a.raw(".end_amdhsa_kernel")

def srd(a, d, b, nbytes, add=0):
    if add:
        a(f"s_add_u32 s{d}, s{b}, {hex(add)}")
        a(f"s_addc_u32 s{d+1}, s{b+1}, 0")
    else:
        a(f"s_mov_b32 s{d}, s{b}")
        a(f"s_mov_b32 s{d+1}, s{b+1}")
    a(f"s_mov_b32 s{d+2}, {hex(nbytes)}")
    a(f"s_mov_b32 s{d+3}, 0x00020000")

def rne_pair(a, x, y, tmp):
    a(f"v_cvt_pk_bf16_f32 v{tmp}, v{x}, v{y}")
    a(f"v_lshlrev_b32 v{x}, 16, v{tmp}")
    a(f"v_and_b32 v{y}, 0xffff0000, v{tmp}")

def row16_sum(a, v, tmp):
    for r in (8, 4, 2, 1):
        a("s_nop 1")
        a(f"v_add_f32_dpp v{v}, v{v}, v{v} row_ror:{r} row_mask:0xf bank_mask:0xf")

STAMP = int(os.environ.get('STAMP', 0))
def stamp(a, i):
    if not STAMP: return
    a("s_memrealtime s[78:79]")
    a("s_waitcnt lgkmcnt(0)")
    a(f"s_mov_b32 s{80+i}, s78")
def stamp_store(a, wsreg, n, idreg="s2", idadd=0):
    if not STAMP: return
    a(f"s_add_u32 s92, s{wsreg}, 0xC00000")
    a(f"s_addc_u32 s93, s{wsreg+1}, 0")
    a("s_mov_b32 s94, 0x100000")
    a("s_mov_b32 s95, 0x00020000")
    a(f"s_add_u32 s96, {idreg}, {idadd}")
    a("s_lshl_b32 s96, s96, 6")
    a("v_cmp_eq_u32 vcc, 0, v0")
    a("s_and_saveexec_b64 s[98:99], vcc")
    for i in range(n):
        a(f"v_mov_b32 v1, s{80+i}")
        a(f"buffer_store_dword v1, off, s[92:95], s96 offset:{4*i}")
    a("s_mov_b64 exec, s[98:99]")
```

```python
from common import *
import os
HS1 = 4096; GS1 = 9216
def k1_body(a, prio=2):
    SA, SB = 3, 2
    A_SL, B_SL, B0 = 16384, 12288, 0xC000
    n = 32
    a(f"""
    s_setprio {prio}
    """)
    stamp(a, 0)
    a(f"""
    s_load_dwordx2 s[4:5], s[0:1], 64
    s_load_dwordx2 s[6:7], s[0:1], 72
    s_load_dwordx2 s[10:11], s[0:1], 120
    s_and_b32 s12, s2, 7
    s_lshr_b32 s13, s2, 3
    s_mul_i32 s12, s12, 27
    s_add_u32 s12, s12, s13
    s_mul_hi_u32 s13, s12, 0x2aaaaaab
    s_mul_i32 s14, s13, 6
    s_sub_u32 s14, s12, s14
    v_lshrrev_b32 v1, 6, v0
    v_and_b32 v2, 63, v0
    s_nop 0
    v_readfirstlane_b32 s15, v1
    s_waitcnt lgkmcnt(0)
    """)
    srd(a, 16, 4, 18874368)
    srd(a, 20, 10, 576*HS1, WS_HT)
    srd(a, 24, 6, 9216)
    srd(a, 28, 10, 576*GS1, WS_G)
    a(f"""
    v_lshrrev_b32 v3, 4, v2
    v_and_b32 v4, 15, v2
    v_lshrrev_b32 v5, 2, v4
    v_xor_b32 v5, v5, v3
    v_lshlrev_b32 v5, 6, v5
    v_and_b32 v6, 3, v2
    v_lshl_add_u32 v5, v6, 4, v5
    v_mul_u32_u24 v6, 0x2400, v3
    v_add_u32 v200, v5, v6
    v_lshrrev_b32 v5, 3, v2
    v_and_b32 v6, 7, v2
    v_xor_b32 v7, v6, v3
    v_lshlrev_b32 v7, 4, v7
    v_mul_u32_u24 v5, {HS1}, v5
    v_add_u32 v201, v5, v7
    v_xor_b32 v202, 64, v201
    s_lshl_b32 s34, s13, 8
    s_mul_i32 s35, s15, {16*9216}
    s_add_u32 s34, s34, s35
    s_mul_i32 s35, s14, 96
    s_mul_i32 s36, s15, 24
    s_add_u32 s35, s35, s36
    s_mul_i32 s35, s35, {HS1}
    s_lshl_b32 s36, s15, 12
    s_mul_i32 s37, s15, 3072
    s_add_u32 s37, s37, {B0}
    s_lshr_b32 s38, s15, 1
    s_and_b32 s39, s15, 1
    v_lshrrev_b32 v5, 5, v2
    v_lshrrev_b32 v6, 2, v4
    v_lshl_add_u32 v7, v5, 3, v6
    v_lshlrev_b32 v7, 8, v7
    v_bfe_u32 v8, v2, 4, 1
    v_lshlrev_b32 v8, 5, v8
    v_and_b32 v9, 3, v2
    v_lshl_add_u32 v8, v9, 3, v8
    v_add_u32 v7, v7, v8
    s_lshl_b32 s41, s39, 13
    v_add_u32 v7, s41, v7
    s_lshl_b32 s41, s38, 1
    v_xor_b32 v8, s41, v6
    v_lshl_add_u32 v204, v8, 6, v7
    s_add_u32 s41, s41, 1
    v_xor_b32 v8, s41, v6
    v_lshl_add_u32 v205, v8, 6, v7
    v_and_b32 v8, 31, v2
    v_bfe_u32 v9, v8, 1, 3
    s_lshl_b32 s41, s39, 2
    v_add_u32 v10, s41, v5
    v_xor_b32 v11, v10, v9
    v_lshlrev_b32 v11, 4, v11
    v_lshl_add_u32 v206, v8, 7, v11
    v_add_u32 v10, 2, v10
    v_xor_b32 v11, v10, v9
    v_lshlrev_b32 v11, 4, v11
    v_lshl_add_u32 v207, v8, 7, v11
    v_add_u32 v206, {B0}, v206
    v_add_u32 v207, {B0}, v207
    s_lshl_b32 s41, s13, 8
    s_lshl_b32 s42, s15, 6
    s_add_u32 s41, s41, s42
    v_lshlrev_b32 v12, 3, v5
    v_add_u32 v12, s41, v12
    v_mov_b32 v222, v12
    """)
    for g in range(4):
        a(f"buffer_load_dwordx2 v[{212+2*g}:{213+2*g}], v12, s[24:27], 0 offen offset:{16*g}")
    a("""
    v_mov_b32 v220, v201
    v_mov_b32 v221, v202
    s_and_b32 s41, s15, 1
    s_cmp_eq_u32 s41, 0
    s_cbranch_scc1 L_g1_par
    v_mov_b32 v220, v202
    v_mov_b32 v221, v201
    """)
    a.label("L_g1_par")
    W = int(os.environ.get("W1", 8))
    a(f"""
    s_mov_b32 s68, s14
    s_mov_b32 s69, 0
    s_mov_b32 s70, 0
    s_mov_b32 s71, s14
    s_mov_b32 s72, 0
    s_mov_b32 s73, 0
    s_mov_b32 s74, s34
    s_mov_b32 s75, s35
    s_mul_i32 s76, s14, 589824
    s_add_u32 s34, s34, s76
    s_lshl_b32 s76, s14, 7
    s_add_u32 s35, s35, s76
    """)
    def adv(ptr, base, q, c, wb, stride):
        return [f"s_add_u32 s{q}, s{q}, 1", f"s_cmp_eq_u32 s{q}, {W}", f"s_cselect_b32 s{q}, 0, s{q}",
                f"s_add_u32 s{c}, s{c}, 1", f"s_cmp_eq_u32 s{c}, {W}", f"s_cselect_b32 s{c}, 0, s{c}",
                f"s_cselect_b32 s76, {W}, 0", f"s_add_u32 s{wb}, s{wb}, s76", f"s_add_u32 s76, s{wb}, s{q}",
                f"s_mul_i32 s76, s76, {stride}", f"s_add_u32 s{ptr}, s{base}, s76"]
    def dmaA(st):
        L = []
        for j in range(4):
            L.append([f"s_add_u32 m0, s36, {(st % SA)*A_SL + j*1024}", f"s_add_u32 s42, s34, {4*j*9216}",
                      "buffer_load_dwordx4 v200, s[16:19], s42 offen lds"])
        L.append(adv(34, 74, 68, 69, 70, 589824))
        return L
    def dmaB(st):
        L = []
        for jj in range(3):
            L.append([f"s_add_u32 m0, s37, {(st % SB)*B_SL + jj*1024}", f"s_add_u32 s42, s35, {8*jj*HS1}",
                      f"buffer_load_dwordx4 v{220 + (jj & 1)}, s[20:23], s42 offen lds"])
        L.append(adv(35, 75, 71, 72, 73, 128))
        return L
    def emit(L):
        for grp in L:
            for x in grp: a(x)
    def reads(st, half, base):
        oa = (st % SA)*A_SL; ob = (st % SB)*B_SL
        for t in range(2):
            a(f"ds_read_b64_tr_b16 v[{base+4*t}:{base+4*t+1}], v{204+t} offset:{oa + half*4096}")
            a(f"ds_read_b64_tr_b16 v[{base+4*t+2}:{base+4*t+3}], v{204+t} offset:{oa + half*4096 + 1024}")
        for d in range(3):
            a(f"ds_read_b128 v[{base+8+4*d}:{base+8+4*d+3}], v{206+half} offset:{ob + d*4096}")
    def mf(base):
        out = []
        for t in range(2):
            for d in range(3):
                c = 100 + 16*(3*t + d)
                out.append(f"v_mfma_f32_32x32x16_bf16 v[{c}:{c+15}], v[{base+4*t}:{base+4*t+3}], v[{base+8+4*d}:{base+8+4*d+3}], v[{c}:{c+15}]")
        return out
    fa, fb = 10, 30
    def tail_part(i):
        reads(i+1, 0, fa)
        D = []
        if i+2 < n: D += dmaB(i+2)
        if i+3 < n: D += dmaA(i+3)
        M = mf(fb) if i >= 0 else []
        if i >= 0: a("s_waitcnt lgkmcnt(7)")
        k = 0
        for mi, m in enumerate(M):
            a(m)
            if mi < 5:
                for _ in range(2):
                    if k < len(D): emit([D[k]]); k += 1
        emit(D[k:])
    def step(i):
        reads(i, 1, fb)
        a("s_waitcnt lgkmcnt(7)")
        for m in mf(fa): a(m)
        if i+1 < n:
            a(f"s_waitcnt vmcnt({4 if i+2 < n else 0}) lgkmcnt(0)")
            a("s_barrier")
            tail_part(i)
        else:
            a("s_waitcnt lgkmcnt(0)")
            for m in mf(fb): a(m)
    emit(dmaA(0)); emit(dmaB(0)); emit(dmaA(1))
    for r in range(96):
        a(f"v_mov_b32 v{r+100}, 0")
    a("s_waitcnt vmcnt(4)")
    a("s_barrier")
    stamp(a, 1)
    tail_part(-1)
    a("s_mov_b32 s40, 4")
    a.label("L_g1_loop")
    for i in range(6): step(i)
    a("s_sub_u32 s40, s40, 1")
    a("s_cmp_lg_u32 s40, 0")
    a("s_cbranch_scc1 L_g1_loop")
    for i in range(24, 32): step(i)
    a("s_nop 15")
    stamp(a, 2)
    a("s_barrier")
    a(f"""
    v_lshlrev_b32 v3, 4, v2
    s_mul_i32 s41, s15, 12288
    v_add_u32 v3, s41, v3
    s_xor_b32 s42, s15, 1
    s_mul_i32 s42, s42, 12288
    v_lshlrev_b32 v4, 4, v2
    v_add_u32 v4, s42, v4
    s_cmp_eq_u32 s39, 0
    s_cbranch_scc0 L_g1_e1
    """)
    for g in range(12):
        a(f"ds_write_b128 v3, v[{148+4*g}:{151+4*g}] offset:{g*1024}")
    a("s_branch L_g1_e2")
    a.label("L_g1_e1")
    for g in range(12):
        a(f"ds_write_b128 v3, v[{100+4*g}:{103+4*g}] offset:{g*1024}")
    a("s_waitcnt lgkmcnt(0)")
    for r in range(48):
        a(f"v_mov_b32 v{100+r}, v{148+r}")
    a.label("L_g1_e2")
    a("s_waitcnt lgkmcnt(0)")
    a("s_barrier")
    for g in range(12):
        a(f"ds_read_b128 v[{148+4*g}:{151+4*g}], v4 offset:{g*1024}")
    a(f"""
    v_and_b32 v8, 31, v2
    s_mul_i32 s41, s14, 96
    v_add_u32 v8, s41, v8
    v_mul_u32_u24 v8, {GS1}, v8
    v_add_u32 v8, v8, v222
    s_mov_b32 s44, 0x3dd2d3e8
    s_mov_b32 s45, 0x40135761
    v_mov_b32 v9, s45
    s_waitcnt vmcnt(0) lgkmcnt(0)
    """)
    for g in range(4):
        a(f"v_lshlrev_b32 v{10+4*g}, 16, v{212+2*g}")
        a(f"v_and_b32 v{11+4*g}, 0xffff0000, v{212+2*g}")
        a(f"v_lshlrev_b32 v{12+4*g}, 16, v{213+2*g}")
        a(f"v_and_b32 v{13+4*g}, 0xffff0000, v{213+2*g}")
    for d in range(3):
        for g in range(4):
            b = 100 + 16*d + 4*g
            for r in range(4):
                a(f"v_add_f32 v{b+r}, v{b+r}, v{b+48+r}")
            rne_pair(a, b, b+1, 30)
            rne_pair(a, b+2, b+3, 31)
            for r in range(4):
                a(f"v_add_f32 v{b+r}, v{b+r}, v{10+4*g+r}")
            rne_pair(a, b, b+1, 30)
            rne_pair(a, b+2, b+3, 31)
            for r in range(4):
                a(f"v_mul_f32 v{32+r}, v{b+r}, v{b+r}")
            for r in range(4):
                a(f"v_fma_f32 v{32+r}, v{32+r}, s44, v9")
            for r in range(4):
                a(f"v_mul_f32 v{32+r}, v{32+r}, v{b+r}")
            for r in range(4):
                a(f"v_exp_f32 v{32+r}, v{32+r}")
            for r in range(4):
                a(f"v_add_f32 v{32+r}, 1.0, v{32+r}")
            for r in range(4):
                a(f"v_rcp_f32 v{32+r}, v{32+r}")
            a("s_nop 0")
            for r in range(4):
                a(f"v_fma_f32 v{b+r}, -v{b+r}, v{32+r}, v{b+r}")
            a(f"v_cvt_pk_bf16_f32 v{36}, v{b}, v{b+1}")
            a(f"v_cvt_pk_bf16_f32 v{37}, v{b+2}, v{b+3}")
            a(f"s_mov_b32 s46, {d*32*GS1}")
            a(f"buffer_store_dwordx2 v[36:37], v8, s[28:31], s46 offen offset:{16*g}")
    stamp(a, 3)
    stamp_store(a, 10, 4)
    a("s_endpgm")
```

```python
from common import *

LOG2E = 0x3fb8aa3b
INV2PI = 0x3e22f983
CSTR = 4160
ARR = 8*CSTR
KT = 2*ARR
P2K = KT + 1280*4

def kc(a, merged=False):
    name = "ssm_kernel"
    if not merged: kernel_head(a, name)
    a(f"""
    s_cmp_ge_u32 s2, 576
    s_cbranch_scc1 L_kc_done
    """)
    stamp(a, 0)
    a(f"""
    s_load_dwordx4 s[4:7], s[0:1], 8
    s_load_dwordx4 s[8:11], s[0:1], 24
    s_load_dwordx4 s[12:15], s[0:1], 40
    s_load_dwordx2 s[16:17], s[0:1], 120
    v_lshrrev_b32 v1, 6, v0
    v_and_b32 v2, 63, v0
    v_and_b32 v3, 15, v0
    v_bfe_u32 v4, v0, 4, 2
    s_nop 0
    v_readfirstlane_b32 s18, v1
    s_waitcnt lgkmcnt(0)
    """)
    srd(a, 20, 4, 147456)
    srd(a, 24, 6, 147456)
    srd(a, 28, 8, 147456)
    srd(a, 32, 10, 147456)
    srd(a, 36, 12, 1152)
    srd(a, 40, 14, 1152)
    a(f"""
    s_lshl_b32 s19, s2, 12
    s_add_u32 s44, s16, s19
    s_addc_u32 s45, s17, 0
    s_add_u32 s48, s44, {hex(WS_AT)}
    s_addc_u32 s49, s45, 0
    s_add_u32 s44, s44, {hex(WS_UT)}
    s_addc_u32 s45, s45, 0
    s_mov_b32 s46, 4096
    s_mov_b32 s47, 0x00020000
    s_mov_b32 s50, 4096
    s_mov_b32 s51, 0x00020000
    s_lshl_b32 s19, s2, 8
    s_lshl_b32 s52, s18, 6
    s_add_u32 s19, s19, s52
    v_lshlrev_b32 v5, 4, v4
    v_add_u32 v5, s19, v5
    buffer_load_dwordx4 v[10:13], v5, s[20:23], 0 offen
    buffer_load_dwordx4 v[14:17], v5, s[24:27], 0 offen
    buffer_load_dwordx4 v[18:21], v5, s[28:31], 0 offen
    buffer_load_dwordx4 v[22:25], v5, s[32:35], 0 offen
    s_lshl_b32 s19, s2, 1
    v_mov_b32 v6, s19
    buffer_load_ushort v26, v6, s[36:39], 0 offen
    buffer_load_ushort v27, v6, s[40:43], 0 offen
    ; B frags
    v_lshlrev_b32 v6, 4, v3
    v_lshrrev_b32 v7, 1, v4
    v_lshlrev_b32 v7, 4, v7
    v_sub_u32 v6, v6, v7
    v_and_b32 v7, 1, v4
    v_lshl_add_u32 v6, v7, 3, v6
    v_lshlrev_b32 v6, 1, v6
    s_lshl_b32 s19, s18, 6
    v_subrev_u32 v6, s19, v6
    v_mov_b32 v8, 0x7ffffff0
    """)
    for i in range(16):
        a(f"v_add_u32 v7, {64*(4*i-4) & 0xffffffff}, v6")
        if i < 3:
            a("v_cmp_gt_i32 vcc, 0, v7")
            a("s_nop 1")
            a("v_cndmask_b32 v7, v7, v8, vcc")
        a(f"buffer_load_dwordx4 v[{128+4*i}:{131+4*i}], v7, s[44:47], 0 offen")
    a("v_lshlrev_b32 v7, 4, v0")
    a("buffer_load_dwordx4 v[192:195], v7, s[44:47], 0 offen")
    a("s_waitcnt vmcnt(17)")
    stamp(a, 1)
    a(f"""
    v_lshlrev_b32 v26, 16, v26
    v_lshlrev_b32 v27, 16, v27
    v_mul_f32 v26, {hex(LOG2E)}, v26
    v_exp_f32 v26, v26
    s_nop 0
    v_mov_b32 v28, v26
    """)
    rne_pair(a, 26, 28, 29)
    a(f"""
    v_cvt_f32_u32 v30, v3
    v_mul_f32 v31, 16.0, v30
    v_add_f32 v32, v26, v26
    """)
    for r in range(16):
        a(f"v_mov_b32 v{100+r}, 0")
    a("v_mov_b32 v116, 0")
    for e in range(8):
        src = lambda base: base + e//2
        def ext(dst, base):
            if e % 2 == 0:
                a(f"v_lshlrev_b32 v{dst}, 16, v{src(base)}")
            else:
                a(f"v_and_b32 v{dst}, 0xffff0000, v{src(base)}")
        ext(40, 10); ext(41, 14); ext(42, 18); ext(43, 22)
        a(f"""
        v_mul_f32 v40, {hex(LOG2E)}, v40
        v_exp_f32 v40, v40
        v_mul_f32 v41, v41, v26
        v_mov_b32 v44, v40
        """)
        rne_pair(a, 40, 44, 45)
        a(f"""
        v_mul_f32 v40, v40, v26
        v_mul_f32 v40, {hex(LOG2E ^ 0x80000000)}, v40
        v_mul_f32 v41, {hex(INV2PI)}, v41
        v_mul_f32 v42, v42, v32
        v_mul_f32 v43, v43, v32
        v_mul_f32 v44, v40, v30
        v_mul_f32 v45, v41, v30
        v_mul_f32 v46, v40, v31
        v_mul_f32 v47, v41, v31
        v_exp_f32 v44, v44
        v_fract_f32 v45, v45
        v_exp_f32 v46, v46
        v_fract_f32 v47, v47
        v_cos_f32 v48, v45
        v_sin_f32 v49, v45
        v_cos_f32 v50, v47
        v_sin_f32 v51, v47
        s_nop 0
        v_mul_f32 v48, v48, v44
        v_mul_f32 v49, v49, v44
        v_mul_f32 v50, v50, v46
        v_mul_f32 v51, v51, v46
        """)
        for s in range(4):
            a(f"""
            v_mul_f32 v52, v50, v42
            v_fma_f32 v52, -v51, v43, v52
            v_mul_f32 v53, v50, v43
            v_fma_f32 v53, v51, v42, v53
            v_sub_f32 v53, 0, v53
            """)
            a("s_nop 1")
            c = 100 + 4*s
            a(f"v_mfma_f32_16x16x4_f32 v[{c}:{c+3}], v52, v48, v[{c}:{c+3}]")
            a(f"v_mfma_f32_16x16x4_f32 v[{c}:{c+3}], v53, v49, v[{c}:{c+3}]")
            a(f"""
            v_mul_f32 v54, v48, v48
            v_fma_f32 v54, -v49, v49, v54
            v_mul_f32 v55, v48, v49
            v_add_f32 v49, v55, v55
            v_mov_b32 v48, v54
            v_mul_f32 v54, v50, v50
            v_fma_f32 v54, -v51, v51, v54
            v_mul_f32 v55, v50, v51
            v_add_f32 v51, v55, v55
            v_mov_b32 v50, v54
            """)
        a("""
        v_mul_f32 v52, v50, v42
        v_fma_f32 v52, -v51, v43, v52
        v_add_f32 v116, v116, v52
        """)
    a("s_nop 15")
    stamp(a, 2)
    a(f"""
    s_lshl_b32 s19, s18, 12
    v_lshlrev_b32 v5, 8, v4
    v_lshl_add_u32 v5, v3, 2, v5
    v_add_u32 v5, s19, v5
    """)
    for s in range(4):
        for r in range(4):
            a(f"ds_write_b32 v5, v{100+4*s+r} offset:{s*1024 + r*64}")
    a(f"""
    s_lshl_b32 s19, s18, 4
    v_lshlrev_b32 v6, 2, v4
    v_add_u32 v6, s19, v6
    v_cmp_eq_u32 vcc, 8, v3
    s_and_saveexec_b64 s[54:55], vcc
    v_add_u32 v6, {P2K}, v6
    ds_write_b32 v6, v116
    s_mov_b64 exec, s[54:55]
    s_waitcnt lgkmcnt(0)
    s_barrier
    v_lshlrev_b32 v5, 4, v0
    ds_read_b128 v[40:43], v5
    ds_read_b128 v[44:47], v5 offset:4096
    ds_read_b128 v[48:51], v5 offset:8192
    ds_read_b128 v[52:55], v5 offset:12288
    v_mov_b32 v6, {P2K}
    ds_read_b128 v[56:59], v6
    ds_read_b128 v[60:63], v6 offset:16
    ds_read_b128 v[64:67], v6 offset:32
    ds_read_b128 v[68:71], v6 offset:48
    s_waitcnt lgkmcnt(0)
    """)
    for r in range(4):
        a(f"v_add_f32 v{40+r}, v{40+r}, v{44+r}")
        a(f"v_add_f32 v{48+r}, v{48+r}, v{52+r}")
        a(f"v_add_f32 v{40+r}, v{40+r}, v{48+r}")
    a("v_add_f32 v56, v56, v57")
    for r in range(58, 72):
        a(f"v_add_f32 v56, v56, v{r}")
    a(f"""
    v_add_u32 v5, {KT}, v5
    ds_write_b128 v5, v[40:43]
    v_mov_b32 v57, 0
    v_mov_b32 v6, {KT + 1152*4}
    v_cmp_eq_u32 vcc, 0, v0
    s_and_saveexec_b64 s[54:55], vcc
    ds_write_b32 v6, v56
    ds_write_b32 v6, v57 offset:4
    s_mov_b64 exec, s[54:55]
    s_waitcnt lgkmcnt(0)
    s_barrier
    """)
    a(f"""
    v_lshlrev_b32 v5, 3, v0
    v_sub_u32 v5, 2047, v5
    v_mov_b32 v9, {KT + 1153*4}
    s_mov_b32 s56, 0x7fff
    """)
    for e in range(15):
        a(f"""
        v_subrev_u32 v6, {e}, v5
        v_max_i32 v7, 0, v6
        v_cvt_f32_u32 v7, v7
        v_bfe_u32 v8, v7, 16, 1
        v_add3_u32 v7, v7, v8, s56
        v_and_b32 v7, 0xffff0000, v7
        v_cvt_u32_f32 v8, v7
        v_lshrrev_b32 v7, 23, v7
        v_subrev_u32 v7, 134, v7
        v_max_i32 v7, 0, v7
        v_lshrrev_b32 v8, v7, v8
        v_lshl_add_u32 v8, v7, 8, v8
        v_lshlrev_b32 v8, 2, v8
        v_add_u32 v8, {KT}, v8
        v_cmp_gt_i32 vcc, 0, v6
        s_nop 1
        v_cndmask_b32 v8, v8, v9, vcc
        ds_read_b32 v{40+e}, v8
        """)
    a("s_waitcnt lgkmcnt(0)")
    def packlists(vb, PE, PE2, PO, PO2):
        for k in range(7):
            a(f"v_cvt_pk_bf16_f32 v{PE+k}, v{vb+2*k}, v{vb+2*k+1}")
            a(f"v_cvt_pk_bf16_f32 v{PO+k}, v{vb+2*k+1}, v{vb+2*k+2}")
        for k in range(7):
            a(f"v_mov_b32 v{PE2+k}, v{PE+k}")
            a(f"v_mov_b32 v{PO2+k}, v{PO+k}")
    def writes(arr, PE, PE2, PO, PO2):
        for c in range(8):
            m = c // 2
            if c % 2 == 0:
                b = PE if m % 2 == 0 else PE2
            else:
                b = PO if m % 2 == 0 else PO2
            a(f"ds_write_b128 v5, v[{b+m}:{b+m+3}] offset:{arr*ARR + c*CSTR}")
    a("v_lshlrev_b32 v5, 4, v0")
    packlists(40, 60, 69, 78, 87)
    writes(0, 60, 69, 78, 87)
    for k in range(7):
        a(f"v_lshlrev_b32 v6, 16, v{60+k}")
        a(f"v_and_b32 v7, 0xffff0000, v{60+k}")
        a(f"v_sub_f32 v{40+2*k}, v{40+2*k}, v6")
        a(f"v_sub_f32 v{40+2*k+1}, v{40+2*k+1}, v7")
    a("v_and_b32 v7, 0xffff0000, v84")
    a("v_sub_f32 v54, v54, v7")
    a("s_waitcnt lgkmcnt(0)")
    packlists(40, 60, 69, 78, 87)
    writes(1, 60, 69, 78, 87)
    a(f"""
    v_mov_b32 v60, 0
    v_mov_b32 v61, 0
    v_mov_b32 v62, 0
    v_mov_b32 v63, 0
    v_mul_u32_u24 v6, {CSTR}, v0
    v_cmp_gt_u32 vcc, 16, v0
    s_and_saveexec_b64 s[54:55], vcc
    ds_write_b128 v6, v[60:63] offset:4096
    s_mov_b64 exec, s[54:55]
    s_waitcnt vmcnt(0) lgkmcnt(0)
    s_barrier
    v_sub_u32 v5, 7, v3
    v_and_b32 v5, 7, v5
    v_lshrrev_b32 v6, 1, v4
    v_lshlrev_b32 v6, 4, v6
    v_and_b32 v7, 1, v4
    v_lshlrev_b32 v7, 3, v7
    v_sub_u32 v7, v7, v6
    v_sub_u32 v7, v7, v3
    v_sub_u32 v7, v7, v5
    s_lshl_b32 s19, s18, 5
    v_subrev_u32 v7, s19, v7
    v_add_u32 v7, 127, v7
    v_lshlrev_b32 v7, 1, v7
    v_mul_u32_u24 v5, {CSTR}, v5
    v_add_u32 v5, v5, v7
    """)
    stamp(a, 3)
    for r in range(32):
        a(f"v_mov_b32 v{64+r}, 0")
    def aread(m, b):
        a(f"ds_read_b128 v[{b}:{b+3}], v5 offset:{256*(15-m)}")
        a(f"ds_read_b128 v[{b+4}:{b+7}], v5 offset:{ARR + 256*(15-m)}")
    aread(0, 40)
    for m in range(16):
        b = 40 if m % 2 == 0 else 48
        if m < 15:
            aread(m+1, 48 if m % 2 == 0 else 40)
            a("s_waitcnt lgkmcnt(2)")
        else:
            a("s_waitcnt lgkmcnt(0)")
        jmin = m // 2
        for h in range(2):
            for jn in range(jmin, 8):
                i = 2*jn - m + 1
                c = 64 + 4*jn
                a(f"v_mfma_f32_16x16x32_bf16 v[{c}:{c+3}], v[{b+4*h}:{b+4*h+3}], v[{128+4*i}:{131+4*i}], v[{c}:{c+3}]")
    a("s_nop 15")
    stamp(a, 4)
    a("s_barrier")
    a(f"""
    v_lshlrev_b32 v5, 6, v3
    v_lshl_add_u32 v5, v4, 4, v5
    s_lshl_b32 s19, s18, 13
    v_add_u32 v5, s19, v5
    """)
    for jn in range(8):
        a(f"ds_write_b128 v5, v[{64+4*jn}:{67+4*jn}] offset:{jn*1024}")
    a("""
    s_waitcnt lgkmcnt(0)
    s_barrier
    v_lshlrev_b32 v5, 5, v0
    """)
    for w in range(4):
        a(f"ds_read_b128 v[{40+8*w}:{43+8*w}], v5 offset:{w*8192}")
        a(f"ds_read_b128 v[{44+8*w}:{47+8*w}], v5 offset:{w*8192+16}")
    a("s_waitcnt lgkmcnt(0)")
    for r in range(8):
        a(f"v_add_f32 v{40+r}, v{40+r}, v{48+r}")
        a(f"v_add_f32 v{56+r}, v{56+r}, v{64+r}")
        a(f"v_add_f32 v{40+r}, v{40+r}, v{56+r}")
    for k in range(4):
        x, y = 40+2*k, 41+2*k
        rne_pair(a, x, y, 72)
        a(f"v_lshlrev_b32 v73, 16, v{192+k}")
        a(f"v_and_b32 v74, 0xffff0000, v{192+k}")
        a("v_mul_f32 v73, v73, v27")
        a("v_mul_f32 v74, v74, v27")
        rne_pair(a, 73, 74, 72)
        a(f"v_add_f32 v{x}, v{x}, v73")
        a(f"v_add_f32 v{y}, v{y}, v74")
        a(f"v_cvt_pk_bf16_f32 v{76+k}, v{x}, v{y}")
    a("v_lshlrev_b32 v5, 4, v0")
    a("buffer_store_dwordx4 v[76:79], v5, s[48:51], 0 offen")
    stamp(a, 5)
    stamp_store(a, 16, 6, "s2", 216)
    a.label("L_kc_done")
    a("s_endpgm")
    if merged: return
    kernel_desc(a, name, 200)
    return (name, 576, 256, P2K + 64)
```

```python
class Asm:
    def __init__(self):
        self.L = []
    def __call__(self, s):
        for ln in s.strip("\n").split("\n"):
            ln = ln.strip()
            if ln:
                self.L.append("    " + ln)
    def label(self, s):
        self.L.append(s + ":")
    def raw(self, s):
        self.L.append(s)
    def text(self):
        return "\n".join(self.L) + "\n"

WS_HT   = 0x000000
WS_UT   = 0x240000
WS_G    = 0x480000
WS_AT   = 0x990000
WS_GATE = 0xBD0000
import os
HS = int(os.environ.get('HS', 4096))
GS = int(os.environ.get('GS', 9216))

def kernel_head(a, name):
    a.raw(".text")
    a.raw(f".globl {name}")
    a.raw(".p2align 8")
    a.raw(f".type {name},@function")
    a.label(name)

def kernel_desc(a, name, vgpr, sgpr=102, accum=None):
    acc = accum if accum is not None else ((vgpr + 3) // 4) * 4
    a.raw('.section .rodata,"a"')
    a.raw(".p2align 6")
    a.raw(f".amdhsa_kernel {name}")
    a.raw(f"  .amdhsa_next_free_vgpr {vgpr}")
    a.raw(f"  .amdhsa_next_free_sgpr {sgpr}")
    a.raw(f"  .amdhsa_accum_offset {acc}")
    a.raw("  .amdhsa_group_segment_fixed_size 0")
    a.raw("  .amdhsa_kernarg_size 128")
    a.raw("  .amdhsa_user_sgpr_count 2")
    a.raw("  .amdhsa_user_sgpr_kernarg_segment_ptr 1")
    a.raw("  .amdhsa_system_sgpr_workgroup_id_x 1")
    a.raw(".end_amdhsa_kernel")

def srd(a, d, b, nbytes, add=0):
    if add:
        a(f"s_add_u32 s{d}, s{b}, {hex(add)}")
        a(f"s_addc_u32 s{d+1}, s{b+1}, 0")
    else:
        a(f"s_mov_b32 s{d}, s{b}")
        a(f"s_mov_b32 s{d+1}, s{b+1}")
    a(f"s_mov_b32 s{d+2}, {hex(nbytes)}")
    a(f"s_mov_b32 s{d+3}, 0x00020000")

def rne_pair(a, x, y, tmp):
    a(f"v_cvt_pk_bf16_f32 v{tmp}, v{x}, v{y}")
    a(f"v_lshlrev_b32 v{x}, 16, v{tmp}")
    a(f"v_and_b32 v{y}, 0xffff0000, v{tmp}")

def row16_sum(a, v, tmp):
    for r in (8, 4, 2, 1):
        a("s_nop 1")
        a(f"v_add_f32_dpp v{v}, v{v}, v{v} row_ror:{r} row_mask:0xf bank_mask:0xf")

STAMP = int(os.environ.get('STAMP', 0))
def stamp(a, i):
    if not STAMP: return
    a("s_memrealtime s[78:79]")
    a("s_waitcnt lgkmcnt(0)")
    a(f"s_mov_b32 s{80+i}, s78")
    a("s_memtime s[78:79]")
    a("s_waitcnt lgkmcnt(0)")
    a(f"s_mov_b32 s{86+i}, s78")
def stamp_store(a, wsreg, n, idreg="s2", idadd=0):
    if not STAMP: return
    a(f"s_add_u32 s92, s{wsreg}, 0xC00000")
    a(f"s_addc_u32 s93, s{wsreg+1}, 0")
    a("s_mov_b32 s94, 0x100000")
    a("s_mov_b32 s95, 0x00020000")
    a(f"s_add_u32 s96, {idreg}, {idadd & 0xffffffff}")
    a("s_lshl_b32 s96, s96, 6")
    a("v_cmp_eq_u32 vcc, 0, v0")
    a("s_and_saveexec_b64 s[98:99], vcc")
    for i in range(12):
        a(f"v_mov_b32 v1, s{80+i}")
        a(f"buffer_store_dword v1, off, s[92:95], s96 offset:{4*i}")
    a("s_mov_b64 exec, s[98:99]")
```

```python
from common import *
def k0(a):
    name = "prep_kernel"
    kernel_head(a, name)
    a(f"""
    s_cmp_ge_u32 s2, 256
    s_cbranch_scc1 L_k0_done
    s_load_dwordx2 s[4:5], s[0:1], 0
    s_load_dwordx2 s[6:7], s[0:1], 0
    s_load_dwordx2 s[8:9], s[0:1], 96
    s_load_dwordx2 s[10:11], s[0:1], 120
    s_lshr_b32 s12, s2, 7
    s_and_b32 s13, s2, 127
    v_lshrrev_b32 v1, 4, v0
    v_and_b32 v2, 15, v0
    s_lshl_b32 s14, s13, 4
    v_add_u32 v3, s14, v1
    v_mul_u32_u24 v3, 0x480, v3
    v_mul_u32_u24 v4, 72, v2
    v_add_u32 v3, v3, v4
    s_waitcnt lgkmcnt(0)
    s_cmp_eq_u32 s12, 0
    s_cselect_b32 s4, s6, s4
    s_cselect_b32 s5, s7, s5
    s_cselect_b32 s15, {WS_HT}, {hex(WS_UT)}
    s_cselect_b32 s36, {HS-4096}, 0
    s_add_u32 s36, s36, 4096
    """)
    srd(a, 16, 4, 2359296)
    srd(a, 20, 8, 1152)
    a("s_add_u32 s24, s10, s15")
    a("s_addc_u32 s25, s11, 0")
    a("s_mul_i32 s26, s36, 576")
    a("s_mov_b32 s27, 0x00020000")
    srd(a, 28, 10, 8192, WS_GATE)
    for j in range(9):
        a(f"buffer_load_dwordx2 v[{10+2*j}:{11+2*j}], v3, s[16:19], 0 offen offset:{8*j}")
    a("s_cmp_eq_u32 s12, 0")
    a("s_cbranch_scc0 L_k0_gate")
    a("s_waitcnt vmcnt(0)")
    for j in range(18):
        a(f"v_lshlrev_b32 v{30+2*j}, 16, v{10+j}")
        a(f"v_and_b32 v{31+2*j}, 0xffff0000, v{10+j}")
    a("v_add_f32 v5, v30, v31")
    for e in range(2, 36):
        a(f"v_add_f32 v5, v5, v{30+e}")
    row16_sum(a, 5, 6)
    a("v_mul_f32 v5, 0x3ae38e39, v5")
    a("v_mov_b32 v6, 0")
    for e in range(36):
        a(f"v_sub_f32 v7, v{30+e}, v5")
        a("v_fmac_f32 v6, v7, v7")
    row16_sum(a, 6, 7)
    a("v_mul_f32 v6, 0x3ae38e39, v6")
    rne_pair(a, 5, 6, 7)
    a("v_add_f32 v6, 0x3727c5ac, v6")
    a("v_mov_b32 v8, v6")
    rne_pair(a, 6, 8, 7)
    a("v_sqrt_f32 v6, v6")
    a("s_nop 0")
    a("v_mov_b32 v8, v6")
    rne_pair(a, 6, 8, 7)
    a("v_rcp_f32 v8, v6")
    a("s_nop 0")
    a("v_fma_f32 v9, -v6, v8, 2.0")
    a("v_mul_f32 v8, v8, v9")
    for j in range(18):
        x, y = 30+2*j, 31+2*j
        a(f"v_sub_f32 v{x}, v{x}, v5")
        a(f"v_sub_f32 v{y}, v{y}, v5")
        rne_pair(a, x, y, 7)
        a(f"v_mul_f32 v{x}, v{x}, v8")
        a(f"v_mul_f32 v{y}, v{y}, v8")
        a(f"v_cvt_pk_bf16_f32 v{10+j}, v{x}, v{y}")
    a("s_branch L_k0_store")
    a.label("L_k0_gate")
    for j in range(9):
        a(f"buffer_load_dwordx2 v[{70+2*j}:{71+2*j}], v4, s[20:23], 0 offen offset:{8*j}")
    a("s_waitcnt vmcnt(0)")
    a("v_mov_b32 v5, 0")
    for j in range(18):
        a(f"v_lshlrev_b32 v30, 16, v{10+j}")
        a(f"v_and_b32 v31, 0xffff0000, v{10+j}")
        a(f"v_lshlrev_b32 v32, 16, v{70+j}")
        a(f"v_and_b32 v33, 0xffff0000, v{70+j}")
        a("v_mul_f32 v30, v30, v32")
        a("v_mul_f32 v31, v31, v33")
        rne_pair(a, 30, 31, 7)
        a("v_add_f32 v5, v5, v30")
        a("v_add_f32 v5, v5, v31")
    row16_sum(a, 5, 6)
    a("v_mov_b32 v6, v5")
    rne_pair(a, 5, 6, 7)
    a("v_mul_f32 v5, 0xbfb8aa3b, v5")
    a("v_exp_f32 v5, v5")
    a("s_nop 0")
    a("v_add_f32 v5, 1.0, v5")
    a("v_rcp_f32 v6, v5")
    a("s_nop 0")
    a("v_fma_f32 v9, -v5, v6, 2.0")
    a("v_mul_f32 v5, v6, v9")
    a("v_mov_b32 v6, v5")
    rne_pair(a, 5, 6, 7)
    a("v_add_u32 v6, s14, v1")
    a("v_lshlrev_b32 v6, 2, v6")
    a("v_cmp_eq_u32 vcc, 0, v2")
    a("s_and_saveexec_b64 s[32:33], vcc")
    a("buffer_store_dword v5, v6, s[28:31], 0 offen")
    a("s_mov_b64 exec, s[32:33]")
    a.label("L_k0_store")
    a("v_mul_u32_u24 v4, 0x490, v2")
    a("v_lshl_add_u32 v4, v1, 1, v4")
    for j in range(18):
        a(f"ds_write_b16 v4, v{10+j} offset:{(2*j)*32}")
        a(f"ds_write_b16_d16_hi v4, v{10+j} offset:{(2*j+1)*32}")
    a("s_waitcnt lgkmcnt(0)")
    a("s_barrier")
    a("v_lshlrev_b32 v4, 5, v0")
    a("v_mov_b32 v6, 1821")
    for j in range(3):
        a(f"v_add_u32 v7, {256*j}, v0")
        a("v_mul_u32_u24 v7, v7, v6")
        a("v_lshrrev_b32 v7, 16, v7")
        a(f"v_lshl_add_u32 v{20+j}, v7, 4, v4")
    a("v_mul_lo_u32 v5, v0, s36")
    a("s_lshl_b32 s14, s13, 5")
    a("v_add_u32 v5, s14, v5")
    a("v_readfirstlane_b32 s34, v0")
    for j in range(3):
        if j == 2:
            a("s_cmp_ge_u32 s34, 64")
            a("s_cbranch_scc1 L_k0_done")
        a(f"ds_read_b128 v[10:13], v{20+j} offset:{j*8192}")
        a(f"ds_read_b128 v[14:17], v{20+j} offset:{j*8192+16}")
        a("s_waitcnt lgkmcnt(0)")
        a(f"s_mul_i32 s35, s36, {j*256}")
        a("buffer_store_dwordx4 v[10:13], v5, s[24:27], s35 offen")
        a("buffer_store_dwordx4 v[14:17], v5, s[24:27], s35 offen offset:16")
        a("s_nop 1")
    a.label("L_k0_done")
    a("s_endpgm")
    kernel_desc(a, name, 96)
    return (name, 256, 256, 18688)
```

```python
from common import *

LOG2E = 0x3fb8aa3b
INV2PI = 0x3e22f983
CSTR = 4160
ARR = 8*CSTR
KT = 2*ARR
P2K = KT + 1280*4

def kc(a, merged=False):
    name = "ssm_kernel"
    if not merged: kernel_head(a, name)
    a(f"""
    s_cmp_ge_u32 s2, 576
    s_cbranch_scc1 L_kc_done
    """)
    stamp(a, 0)
    a(f"""
    s_load_dwordx4 s[4:7], s[0:1], 8
    s_load_dwordx4 s[8:11], s[0:1], 24
    s_load_dwordx4 s[12:15], s[0:1], 40
    s_load_dwordx2 s[16:17], s[0:1], 120
    v_lshrrev_b32 v1, 6, v0
    v_and_b32 v2, 63, v0
    v_and_b32 v3, 15, v0
    v_bfe_u32 v4, v0, 4, 2
    s_nop 0
    v_readfirstlane_b32 s18, v1
    s_waitcnt lgkmcnt(0)
    """)
    srd(a, 20, 4, 147456)
    srd(a, 24, 6, 147456)
    srd(a, 28, 8, 147456)
    srd(a, 32, 10, 147456)
    srd(a, 36, 12, 1152)
    srd(a, 40, 14, 1152)
    a(f"""
    s_lshl_b32 s19, s2, 12
    s_add_u32 s44, s16, s19
    s_addc_u32 s45, s17, 0
    s_add_u32 s48, s44, {hex(WS_AT)}
    s_addc_u32 s49, s45, 0
    s_add_u32 s44, s44, {hex(WS_UT)}
    s_addc_u32 s45, s45, 0
    s_mov_b32 s46, 4096
    s_mov_b32 s47, 0x00020000
    s_mov_b32 s50, 4096
    s_mov_b32 s51, 0x00020000
    s_lshl_b32 s19, s2, 8
    s_lshl_b32 s52, s18, 6
    s_add_u32 s19, s19, s52
    v_lshlrev_b32 v5, 4, v4
    v_add_u32 v5, s19, v5
    buffer_load_dwordx4 v[10:13], v5, s[20:23], 0 offen
    buffer_load_dwordx4 v[14:17], v5, s[24:27], 0 offen
    buffer_load_dwordx4 v[18:21], v5, s[28:31], 0 offen
    buffer_load_dwordx4 v[22:25], v5, s[32:35], 0 offen
    s_lshl_b32 s19, s2, 1
    v_mov_b32 v6, s19
    buffer_load_ushort v26, v6, s[36:39], 0 offen
    buffer_load_ushort v27, v6, s[40:43], 0 offen
    ; B frags
    v_lshlrev_b32 v6, 4, v3
    v_lshrrev_b32 v7, 1, v4
    v_lshlrev_b32 v7, 4, v7
    v_sub_u32 v6, v6, v7
    v_and_b32 v7, 1, v4
    v_lshl_add_u32 v6, v7, 3, v6
    v_lshlrev_b32 v6, 1, v6
    s_lshl_b32 s19, s18, 6
    v_subrev_u32 v6, s19, v6
    v_mov_b32 v8, 0x7ffffff0
    """)
    for i in range(16):
        a(f"v_add_u32 v7, {64*(4*i-4) & 0xffffffff}, v6")
        if i < 3:
            a("v_cmp_gt_i32 vcc, 0, v7")
            a("s_nop 1")
            a("v_cndmask_b32 v7, v7, v8, vcc")
        a(f"buffer_load_dwordx4 v[{128+4*i}:{131+4*i}], v7, s[44:47], 0 offen")
    a("v_lshlrev_b32 v7, 4, v0")
    a("buffer_load_dwordx4 v[192:195], v7, s[44:47], 0 offen")
    a("s_waitcnt vmcnt(17)")
    stamp(a, 1)
    a(f"""
    v_lshlrev_b32 v26, 16, v26
    v_lshlrev_b32 v27, 16, v27
    v_mul_f32 v26, {hex(LOG2E)}, v26
    v_exp_f32 v26, v26
    s_nop 0
    v_mov_b32 v28, v26
    """)
    rne_pair(a, 26, 28, 29)
    a(f"""
    v_cvt_f32_u32 v30, v3
    v_mul_f32 v31, 16.0, v30
    v_add_f32 v32, v26, v26
    v_sub_f32 v33, 0, v32
    """)
    for r in range(16):
        a(f"v_mov_b32 v{100+r}, 0")
        a(f"v_mov_b32 v{64+r}, 0")
    a("v_mov_b32 v116, 0")
    for e in range(8):
        src = lambda base: base + e//2
        def ext(dst, base):
            if e % 2 == 0:
                a(f"v_lshlrev_b32 v{dst}, 16, v{src(base)}")
            else:
                a(f"v_and_b32 v{dst}, 0xffff0000, v{src(base)}")
        ext(40, 10); ext(41, 14); ext(42, 18); ext(43, 22)
        a(f"""
        v_mul_f32 v40, {hex(LOG2E)}, v40
        v_exp_f32 v40, v40
        v_mul_f32 v41, v41, v26
        v_mov_b32 v44, v40
        """)
        rne_pair(a, 40, 44, 45)
        a(f"""
        v_mul_f32 v40, v40, v26
        v_mul_f32 v40, {hex(LOG2E ^ 0x80000000)}, v40
        v_mul_f32 v41, {hex(INV2PI)}, v41
        v_mul_f32 v42, v42, v32
        v_mul_f32 v43, v43, v33
        v_mul_f32 v44, v40, v30
        v_mul_f32 v46, v41, v30
        v_mul_f32 v45, v40, v31
        v_mul_f32 v47, v41, v31
        v_exp_f32 v44, v44
        v_fract_f32 v46, v46
        v_exp_f32 v45, v45
        v_fract_f32 v47, v47
        v_cos_f32 v48, v46
        v_cos_f32 v49, v47
        v_sin_f32 v50, v46
        v_sin_f32 v51, v47
        s_nop 0
        v_pk_mul_f32 v[48:49], v[48:49], v[44:45]
        v_pk_mul_f32 v[50:51], v[50:51], v[44:45]
        """)
        RE, IM = 48, 50
        for s_ in range(4):
            nRE = 54 if RE == 48 else 48
            nIM = 58 if IM == 50 else 50
            c = 100 + 4*s_; c2 = 64 + 4*s_
            a(f"""
            v_pk_mul_f32 v[52:53], v[{RE}:{RE+1}], v[42:43] op_sel:[1,0] op_sel_hi:[1,1]
            v_pk_fma_f32 v[52:53], v[{IM}:{IM+1}], v[42:43], v[52:53] op_sel:[1,1,0] op_sel_hi:[1,0,1] neg_hi:[0,1,0]
            v_pk_mul_f32 v[{nRE}:{nRE+1}], v[{RE}:{RE+1}], v[{RE}:{RE+1}]
            v_pk_mul_f32 v[{nIM}:{nIM+1}], v[{RE}:{RE+1}], v[{IM}:{IM+1}]
            v_mfma_f32_16x16x4_f32 v[{c}:{c+3}], v52, v{RE}, v[{c}:{c+3}]
            v_pk_fma_f32 v[{nRE}:{nRE+1}], v[{IM}:{IM+1}], v[{IM}:{IM+1}], v[{nRE}:{nRE+1}] neg_lo:[1,0,0] neg_hi:[1,0,0]
            v_pk_add_f32 v[{nIM}:{nIM+1}], v[{nIM}:{nIM+1}], v[{nIM}:{nIM+1}]
            v_mfma_f32_16x16x4_f32 v[{c2}:{c2+3}], v53, v{IM}, v[{c2}:{c2+3}]
            """)
            RE, IM = nRE, nIM
        assert RE == 48 and IM == 50
        a("""
        v_mul_f32 v52, v49, v42
        v_fma_f32 v52, v51, v43, v52
        v_add_f32 v116, v116, v52
        """)
    a("s_nop 15")
    for r in range(16):
        a(f"v_add_f32 v{100+r}, v{100+r}, v{64+r}")
    a("s_nop 15")
    stamp(a, 2)
    a(f"""
    s_lshl_b32 s19, s18, 12
    v_lshlrev_b32 v5, 8, v4
    v_lshl_add_u32 v5, v3, 2, v5
    v_add_u32 v5, s19, v5
    """)
    for s in range(4):
        for r in range(4):
            a(f"ds_write_b32 v5, v{100+4*s+r} offset:{s*1024 + r*64}")
    a(f"""
    s_lshl_b32 s19, s18, 4
    v_lshlrev_b32 v6, 2, v4
    v_add_u32 v6, s19, v6
    v_cmp_eq_u32 vcc, 8, v3
    s_and_saveexec_b64 s[54:55], vcc
    v_add_u32 v6, {P2K}, v6
    ds_write_b32 v6, v116
    s_mov_b64 exec, s[54:55]
    s_waitcnt lgkmcnt(0)
    s_barrier
    v_lshlrev_b32 v5, 4, v0
    ds_read_b128 v[40:43], v5
    ds_read_b128 v[44:47], v5 offset:4096
    ds_read_b128 v[48:51], v5 offset:8192
    ds_read_b128 v[52:55], v5 offset:12288
    v_mov_b32 v6, {P2K}
    ds_read_b128 v[56:59], v6
    ds_read_b128 v[60:63], v6 offset:16
    ds_read_b128 v[64:67], v6 offset:32
    ds_read_b128 v[68:71], v6 offset:48
    s_waitcnt lgkmcnt(0)
    """)
    for r in range(4):
        a(f"v_add_f32 v{40+r}, v{40+r}, v{44+r}")
        a(f"v_add_f32 v{48+r}, v{48+r}, v{52+r}")
        a(f"v_add_f32 v{40+r}, v{40+r}, v{48+r}")
    a("v_add_f32 v56, v56, v57")
    for r in range(58, 72):
        a(f"v_add_f32 v56, v56, v{r}")
    a(f"""
    v_add_u32 v5, {KT}, v5
    ds_write_b128 v5, v[40:43]
    v_mov_b32 v57, 0
    v_mov_b32 v6, {KT + 1152*4}
    v_cmp_eq_u32 vcc, 0, v0
    s_and_saveexec_b64 s[54:55], vcc
    ds_write_b32 v6, v56
    ds_write_b32 v6, v57 offset:4
    s_mov_b64 exec, s[54:55]
    s_waitcnt lgkmcnt(0)
    s_barrier
    """)
    a(f"""
    v_lshlrev_b32 v5, 3, v0
    v_sub_u32 v5, 2047, v5
    v_mov_b32 v9, {KT + 1153*4}
    s_mov_b32 s56, 0x7fff
    """)
    for e in range(15):
        a(f"""
        v_subrev_u32 v6, {e}, v5
        v_max_i32 v7, 0, v6
        v_cvt_f32_u32 v7, v7
        v_bfe_u32 v8, v7, 16, 1
        v_add3_u32 v7, v7, v8, s56
        v_and_b32 v7, 0xffff0000, v7
        v_cvt_u32_f32 v8, v7
        v_lshrrev_b32 v7, 23, v7
        v_subrev_u32 v7, 134, v7
        v_max_i32 v7, 0, v7
        v_lshrrev_b32 v8, v7, v8
        v_lshl_add_u32 v8, v7, 8, v8
        v_lshlrev_b32 v8, 2, v8
        v_add_u32 v8, {KT}, v8
        v_cmp_gt_i32 vcc, 0, v6
        s_nop 1
        v_cndmask_b32 v8, v8, v9, vcc
        ds_read_b32 v{40+e}, v8
        """)
    a("s_waitcnt lgkmcnt(0)")
    def packlists(vb, PE, PE2, PO, PO2):
        for k in range(7):
            a(f"v_cvt_pk_bf16_f32 v{PE+k}, v{vb+2*k}, v{vb+2*k+1}")
            a(f"v_cvt_pk_bf16_f32 v{PO+k}, v{vb+2*k+1}, v{vb+2*k+2}")
        for k in range(7):
            a(f"v_mov_b32 v{PE2+k}, v{PE+k}")
            a(f"v_mov_b32 v{PO2+k}, v{PO+k}")
    def writes(arr, PE, PE2, PO, PO2):
        for c in range(8):
            m = c // 2
            if c % 2 == 0:
                b = PE if m % 2 == 0 else PE2
            else:
                b = PO if m % 2 == 0 else PO2
            a(f"ds_write_b128 v5, v[{b+m}:{b+m+3}] offset:{arr*ARR + c*CSTR}")
    a("v_lshlrev_b32 v5, 4, v0")
    packlists(40, 60, 69, 78, 87)
    writes(0, 60, 69, 78, 87)
    for k in range(7):
        a(f"v_lshlrev_b32 v6, 16, v{60+k}")
        a(f"v_and_b32 v7, 0xffff0000, v{60+k}")
        a(f"v_sub_f32 v{40+2*k}, v{40+2*k}, v6")
        a(f"v_sub_f32 v{40+2*k+1}, v{40+2*k+1}, v7")
    a("v_and_b32 v7, 0xffff0000, v84")
    a("v_sub_f32 v54, v54, v7")
    a("s_waitcnt lgkmcnt(0)")
    packlists(40, 60, 69, 78, 87)
    writes(1, 60, 69, 78, 87)
    a(f"""
    v_mov_b32 v60, 0
    v_mov_b32 v61, 0
    v_mov_b32 v62, 0
    v_mov_b32 v63, 0
    v_mul_u32_u24 v6, {CSTR}, v0
    v_cmp_gt_u32 vcc, 16, v0
    s_and_saveexec_b64 s[54:55], vcc
    ds_write_b128 v6, v[60:63] offset:4096
    s_mov_b64 exec, s[54:55]
    s_waitcnt vmcnt(0) lgkmcnt(0)
    s_barrier
    v_sub_u32 v5, 7, v3
    v_and_b32 v5, 7, v5
    v_lshrrev_b32 v6, 1, v4
    v_lshlrev_b32 v6, 4, v6
    v_and_b32 v7, 1, v4
    v_lshlrev_b32 v7, 3, v7
    v_sub_u32 v7, v7, v6
    v_sub_u32 v7, v7, v3
    v_sub_u32 v7, v7, v5
    s_lshl_b32 s19, s18, 5
    v_subrev_u32 v7, s19, v7
    v_add_u32 v7, 127, v7
    v_lshlrev_b32 v7, 1, v7
    v_mul_u32_u24 v5, {CSTR}, v5
    v_add_u32 v5, v5, v7
    """)
    stamp(a, 3)
    for r in range(32):
        a(f"v_mov_b32 v{64+r}, 0")
    def aread(m, b):
        a(f"ds_read_b128 v[{b}:{b+3}], v5 offset:{256*(15-m)}")
        a(f"ds_read_b128 v[{b+4}:{b+7}], v5 offset:{ARR + 256*(15-m)}")
    aread(0, 40)
    for m in range(16):
        b = 40 if m % 2 == 0 else 48
        if m < 15:
            aread(m+1, 48 if m % 2 == 0 else 40)
            a("s_waitcnt lgkmcnt(2)")
        else:
            a("s_waitcnt lgkmcnt(0)")
        jmin = m // 2
        for h in range(2):
            for jn in range(jmin, 8):
                i = 2*jn - m + 1
                c = 64 + 4*jn
                a(f"v_mfma_f32_16x16x32_bf16 v[{c}:{c+3}], v[{b+4*h}:{b+4*h+3}], v[{128+4*i}:{131+4*i}], v[{c}:{c+3}]")
    a("s_nop 15")
    stamp(a, 4)
    a("s_barrier")
    a(f"""
    v_lshlrev_b32 v5, 6, v3
    v_lshl_add_u32 v5, v4, 4, v5
    s_lshl_b32 s19, s18, 13
    v_add_u32 v5, s19, v5
    """)
    for jn in range(8):
        a(f"ds_write_b128 v5, v[{64+4*jn}:{67+4*jn}] offset:{jn*1024}")
    a("""
    s_waitcnt lgkmcnt(0)
    s_barrier
    v_lshlrev_b32 v5, 5, v0
    """)
    for w in range(4):
        a(f"ds_read_b128 v[{40+8*w}:{43+8*w}], v5 offset:{w*8192}")
        a(f"ds_read_b128 v[{44+8*w}:{47+8*w}], v5 offset:{w*8192+16}")
    a("s_waitcnt lgkmcnt(0)")
    for r in range(8):
        a(f"v_add_f32 v{40+r}, v{40+r}, v{48+r}")
        a(f"v_add_f32 v{56+r}, v{56+r}, v{64+r}")
        a(f"v_add_f32 v{40+r}, v{40+r}, v{56+r}")
    for k in range(4):
        x, y = 40+2*k, 41+2*k
        rne_pair(a, x, y, 72)
        a(f"v_lshlrev_b32 v73, 16, v{192+k}")
        a(f"v_and_b32 v74, 0xffff0000, v{192+k}")
        a("v_mul_f32 v73, v73, v27")
        a("v_mul_f32 v74, v74, v27")
        rne_pair(a, 73, 74, 72)
        a(f"v_add_f32 v{x}, v{x}, v73")
        a(f"v_add_f32 v{y}, v{y}, v74")
        a(f"v_cvt_pk_bf16_f32 v{76+k}, v{x}, v{y}")
    a("v_lshlrev_b32 v5, 4, v0")
    a("buffer_store_dwordx4 v[76:79], v5, s[48:51], 0 offen")
    stamp(a, 5)
    stamp_store(a, 16, 6, "s2", 216)
    a.label("L_kc_done")
    a("s_endpgm")
    if merged: return
    kernel_desc(a, name, 200)
    return (name, 576, 256, P2K + 64)
```

```python
import sys, os
from common import *
from kc import kc
from k1d import k1_body
from k0 import k0
base = open(sys.argv[1]).read()
head, rest = base.split('.amdgcn_target "amdgcn-amd-amdhsa--gfx950"\n', 1)
parts = rest.split(".text\n")
assert len(parts) == 5, len(parts)
prep, ssm, g1, g2 = parts[1:]
a0 = Asm()
k0(a0)
prep_new = a0.text().split('.text\n', 1)[1]
if os.environ.get('CHKPREP'): print('prep same:', prep_new.strip() == prep.strip())
prep = prep_new
a = Asm()
kernel_head(a, "mix_kernel")
a("s_cmp_ge_u32 s2, 216")
a("s_cbranch_scc1 L_mix_ssm")
k1_body(a, int(os.environ.get("PRIO", 2)))
a.label("L_mix_ssm")
a("s_sub_u32 s2, s2, 216")
a("s_setprio %d" % int(os.environ.get("SPRIO", 0)))
kc(a, merged=True)
kernel_desc(a, "mix_kernel", 232)
hl = [l for l in head.split("\n") if not l.startswith("; @launch")]
head2 = "\n".join(hl).rstrip("\n") + "\n"
head2 += "; @launch kernel=prep_kernel grid=(256,1,1) block=(256,1,1) lds=18688\n"
head2 += "; @launch kernel=mix_kernel grid=(504,1,1) block=(256,1,1) lds=73728\n"
head2 += "; @launch kernel=gemm2_kernel grid=(192,1,1) block=(256,1,1) lds=163840\n"
out = head2 + '.amdgcn_target "amdgcn-amd-amdhsa--gfx950"\n' + ".text\n" + prep + a.text() + ".text\n" + g2
open(sys.argv[2], "w").write(out)
print(len(out))
```

```python
from common import *

LOG2E = 0x3fb8aa3b
INV2PI = 0x3e22f983
CSTR = 4160
ARR = 8*CSTR
KT = 2*ARR
P2K = KT + 1280*4

def kc(a, merged=False):
    name = "ssm_kernel"
    if not merged: kernel_head(a, name)
    a(f"""
    s_cmp_ge_u32 s2, 288
    s_cbranch_scc1 L_kc_done
    """)
    stamp(a, 0)
    a(f"""
    s_load_dwordx4 s[4:7], s[0:1], 8
    s_load_dwordx4 s[8:11], s[0:1], 24
    s_load_dwordx4 s[12:15], s[0:1], 40
    s_load_dwordx2 s[16:17], s[0:1], 120
    v_lshrrev_b32 v1, 6, v0
    v_and_b32 v2, 63, v0
    v_and_b32 v3, 15, v0
    v_bfe_u32 v4, v0, 4, 2
    s_nop 0
    v_readfirstlane_b32 s18, v1
    s_waitcnt lgkmcnt(0)
    """)
    srd(a, 20, 4, 147456)
    srd(a, 24, 6, 147456)
    srd(a, 28, 8, 147456)
    srd(a, 32, 10, 147456)
    srd(a, 36, 12, 1152)
    srd(a, 40, 14, 1152)
    def pf(ch):
        a(f"""
        s_lshl_b32 s19, {ch}, 8
        s_lshl_b32 s52, s18, 6
        s_add_u32 s19, s19, s52
        v_lshlrev_b32 v218, 4, v4
        v_add_u32 v218, s19, v218
        buffer_load_dwordx4 v[200:203], v218, s[20:23], 0 offen
        buffer_load_dwordx4 v[204:207], v218, s[24:27], 0 offen
        buffer_load_dwordx4 v[208:211], v218, s[28:31], 0 offen
        buffer_load_dwordx4 v[212:215], v218, s[32:35], 0 offen
        s_lshl_b32 s19, {ch}, 1
        v_mov_b32 v219, s19
        buffer_load_ushort v216, v219, s[36:39], 0 offen
        buffer_load_ushort v217, v219, s[40:43], 0 offen
        """)
    pf("s2")
    a("s_mov_b32 s57, 0")
    a.label("L_kc_loop")
    a(f"""
    s_lshl_b32 s19, s2, 12
    s_add_u32 s44, s16, s19
    s_addc_u32 s45, s17, 0
    s_add_u32 s48, s44, {hex(WS_AT)}
    s_addc_u32 s49, s45, 0
    s_add_u32 s44, s44, {hex(WS_UT)}
    s_addc_u32 s45, s45, 0
    s_mov_b32 s46, 4096
    s_mov_b32 s47, 0x00020000
    s_mov_b32 s50, 4096
    s_mov_b32 s51, 0x00020000
    ; B frags
    v_lshlrev_b32 v6, 4, v3
    v_lshrrev_b32 v7, 1, v4
    v_lshlrev_b32 v7, 4, v7
    v_sub_u32 v6, v6, v7
    v_and_b32 v7, 1, v4
    v_lshl_add_u32 v6, v7, 3, v6
    v_lshlrev_b32 v6, 1, v6
    s_lshl_b32 s19, s18, 6
    v_subrev_u32 v6, s19, v6
    v_mov_b32 v8, 0x7ffffff0
    """)
    for i in range(16):
        a(f"v_add_u32 v7, {64*(4*i-4) & 0xffffffff}, v6")
        if i < 3:
            a("v_cmp_gt_i32 vcc, 0, v7")
            a("s_nop 1")
            a("v_cndmask_b32 v7, v7, v8, vcc")
        a(f"buffer_load_dwordx4 v[{128+4*i}:{131+4*i}], v7, s[44:47], 0 offen")
    a("v_lshlrev_b32 v7, 4, v0")
    a("buffer_load_dwordx4 v[192:195], v7, s[44:47], 0 offen")
    a("s_waitcnt vmcnt(17)")
    for r in range(18):
        a(f"v_mov_b32 v{10+r}, v{200+r}")
    stamp(a, 1)
    a(f"""
    v_lshlrev_b32 v26, 16, v26
    v_lshlrev_b32 v27, 16, v27
    v_mul_f32 v26, {hex(LOG2E)}, v26
    v_exp_f32 v26, v26
    s_nop 0
    v_mov_b32 v28, v26
    """)
    rne_pair(a, 26, 28, 29)
    a(f"""
    v_cvt_f32_u32 v30, v3
    v_mul_f32 v31, 16.0, v30
    v_add_f32 v32, v26, v26
    v_sub_f32 v33, 0, v32
    """)
    for r in range(16):
        a(f"v_mov_b32 v{100+r}, 0")
        a(f"v_mov_b32 v{64+r}, 0")
    a("v_mov_b32 v116, 0")
    for e in range(8):
        src = lambda base: base + e//2
        def ext(dst, base):
            if e % 2 == 0:
                a(f"v_lshlrev_b32 v{dst}, 16, v{src(base)}")
            else:
                a(f"v_and_b32 v{dst}, 0xffff0000, v{src(base)}")
        ext(40, 10); ext(41, 14); ext(42, 18); ext(43, 22)
        a(f"""
        v_mul_f32 v40, {hex(LOG2E)}, v40
        v_exp_f32 v40, v40
        v_mul_f32 v41, v41, v26
        v_mov_b32 v44, v40
        """)
        rne_pair(a, 40, 44, 45)
        a(f"""
        v_mul_f32 v40, v40, v26
        v_mul_f32 v40, {hex(LOG2E ^ 0x80000000)}, v40
        v_mul_f32 v41, {hex(INV2PI)}, v41
        v_mul_f32 v42, v42, v32
        v_mul_f32 v43, v43, v33
        v_mul_f32 v44, v40, v30
        v_mul_f32 v46, v41, v30
        v_mul_f32 v45, v40, v31
        v_mul_f32 v47, v41, v31
        v_exp_f32 v44, v44
        v_fract_f32 v46, v46
        v_exp_f32 v45, v45
        v_fract_f32 v47, v47
        v_cos_f32 v48, v46
        v_cos_f32 v49, v47
        v_sin_f32 v50, v46
        v_sin_f32 v51, v47
        s_nop 0
        v_pk_mul_f32 v[48:49], v[48:49], v[44:45]
        v_pk_mul_f32 v[50:51], v[50:51], v[44:45]
        """)
        RE, IM = 48, 50
        for s_ in range(4):
            nRE = 54 if RE == 48 else 48
            nIM = 58 if IM == 50 else 50
            c = 100 + 4*s_; c2 = 64 + 4*s_
            a(f"""
            v_pk_mul_f32 v[52:53], v[{RE}:{RE+1}], v[42:43] op_sel:[1,0] op_sel_hi:[1,1]
            v_pk_fma_f32 v[52:53], v[{IM}:{IM+1}], v[42:43], v[52:53] op_sel:[1,1,0] op_sel_hi:[1,0,1] neg_hi:[0,1,0]
            v_pk_mul_f32 v[{nRE}:{nRE+1}], v[{RE}:{RE+1}], v[{RE}:{RE+1}]
            v_pk_mul_f32 v[{nIM}:{nIM+1}], v[{RE}:{RE+1}], v[{IM}:{IM+1}]
            v_mfma_f32_16x16x4_f32 v[{c}:{c+3}], v52, v{RE}, v[{c}:{c+3}]
            v_pk_fma_f32 v[{nRE}:{nRE+1}], v[{IM}:{IM+1}], v[{IM}:{IM+1}], v[{nRE}:{nRE+1}] neg_lo:[1,0,0] neg_hi:[1,0,0]
            v_pk_add_f32 v[{nIM}:{nIM+1}], v[{nIM}:{nIM+1}], v[{nIM}:{nIM+1}]
            v_mfma_f32_16x16x4_f32 v[{c2}:{c2+3}], v53, v{IM}, v[{c2}:{c2+3}]
            """)
            RE, IM = nRE, nIM
        assert RE == 48 and IM == 50
        a("""
        v_mul_f32 v52, v49, v42
        v_fma_f32 v52, v51, v43, v52
        v_add_f32 v116, v116, v52
        """)
    a("s_nop 15")
    for r in range(16):
        a(f"v_add_f32 v{100+r}, v{100+r}, v{64+r}")
    a("s_nop 15")
    stamp(a, 2)
    a(f"""
    s_lshl_b32 s19, s18, 12
    v_lshlrev_b32 v5, 8, v4
    v_lshl_add_u32 v5, v3, 2, v5
    v_add_u32 v5, s19, v5
    """)
    for s in range(4):
        for r in range(4):
            a(f"ds_write_b32 v5, v{100+4*s+r} offset:{s*1024 + r*64}")
    a(f"""
    s_lshl_b32 s19, s18, 4
    v_lshlrev_b32 v6, 2, v4
    v_add_u32 v6, s19, v6
    v_cmp_eq_u32 vcc, 8, v3
    s_and_saveexec_b64 s[54:55], vcc
    v_add_u32 v6, {P2K}, v6
    ds_write_b32 v6, v116
    s_mov_b64 exec, s[54:55]
    s_waitcnt lgkmcnt(0)
    s_barrier
    v_lshlrev_b32 v5, 4, v0
    ds_read_b128 v[40:43], v5
    ds_read_b128 v[44:47], v5 offset:4096
    ds_read_b128 v[48:51], v5 offset:8192
    ds_read_b128 v[52:55], v5 offset:12288
    v_mov_b32 v6, {P2K}
    ds_read_b128 v[56:59], v6
    ds_read_b128 v[60:63], v6 offset:16
    ds_read_b128 v[64:67], v6 offset:32
    ds_read_b128 v[68:71], v6 offset:48
    s_waitcnt lgkmcnt(0)
    """)
    for r in range(4):
        a(f"v_add_f32 v{40+r}, v{40+r}, v{44+r}")
        a(f"v_add_f32 v{48+r}, v{48+r}, v{52+r}")
        a(f"v_add_f32 v{40+r}, v{40+r}, v{48+r}")
    a("v_add_f32 v56, v56, v57")
    for r in range(58, 72):
        a(f"v_add_f32 v56, v56, v{r}")
    a(f"""
    v_add_u32 v5, {KT}, v5
    ds_write_b128 v5, v[40:43]
    v_mov_b32 v57, 0
    v_mov_b32 v6, {KT + 1152*4}
    v_cmp_eq_u32 vcc, 0, v0
    s_and_saveexec_b64 s[54:55], vcc
    ds_write_b32 v6, v56
    ds_write_b32 v6, v57 offset:4
    s_mov_b64 exec, s[54:55]
    s_waitcnt lgkmcnt(0)
    s_barrier
    """)
    a(f"""
    v_lshlrev_b32 v5, 3, v0
    v_sub_u32 v5, 2047, v5
    v_mov_b32 v9, {KT + 1153*4}
    s_mov_b32 s56, 0x7fff
    """)
    for e in range(15):
        a(f"""
        v_subrev_u32 v6, {e}, v5
        v_max_i32 v7, 0, v6
        v_cvt_f32_u32 v7, v7
        v_bfe_u32 v8, v7, 16, 1
        v_add3_u32 v7, v7, v8, s56
        v_and_b32 v7, 0xffff0000, v7
        v_cvt_u32_f32 v8, v7
        v_lshrrev_b32 v7, 23, v7
        v_subrev_u32 v7, 134, v7
        v_max_i32 v7, 0, v7
        v_lshrrev_b32 v8, v7, v8
        v_lshl_add_u32 v8, v7, 8, v8
        v_lshlrev_b32 v8, 2, v8
        v_add_u32 v8, {KT}, v8
        v_cmp_gt_i32 vcc, 0, v6
        s_nop 1
        v_cndmask_b32 v8, v8, v9, vcc
        ds_read_b32 v{40+e}, v8
        """)
    a("s_waitcnt lgkmcnt(0)")
    def packlists(vb, PE, PE2, PO, PO2):
        for k in range(7):
            a(f"v_cvt_pk_bf16_f32 v{PE+k}, v{vb+2*k}, v{vb+2*k+1}")
            a(f"v_cvt_pk_bf16_f32 v{PO+k}, v{vb+2*k+1}, v{vb+2*k+2}")
        for k in range(7):
            a(f"v_mov_b32 v{PE2+k}, v{PE+k}")
            a(f"v_mov_b32 v{PO2+k}, v{PO+k}")
    def writes(arr, PE, PE2, PO, PO2):
        for c in range(8):
            m = c // 2
            if c % 2 == 0:
                b = PE if m % 2 == 0 else PE2
            else:
                b = PO if m % 2 == 0 else PO2
            a(f"ds_write_b128 v5, v[{b+m}:{b+m+3}] offset:{arr*ARR + c*CSTR}")
    a("v_lshlrev_b32 v5, 4, v0")
    packlists(40, 60, 69, 78, 87)
    writes(0, 60, 69, 78, 87)
    for k in range(7):
        a(f"v_lshlrev_b32 v6, 16, v{60+k}")
        a(f"v_and_b32 v7, 0xffff0000, v{60+k}")
        a(f"v_sub_f32 v{40+2*k}, v{40+2*k}, v6")
        a(f"v_sub_f32 v{40+2*k+1}, v{40+2*k+1}, v7")
    a("v_and_b32 v7, 0xffff0000, v84")
    a("v_sub_f32 v54, v54, v7")
    a("s_waitcnt lgkmcnt(0)")
    packlists(40, 60, 69, 78, 87)
    writes(1, 60, 69, 78, 87)
    a(f"""
    v_mov_b32 v60, 0
    v_mov_b32 v61, 0
    v_mov_b32 v62, 0
    v_mov_b32 v63, 0
    v_mul_u32_u24 v6, {CSTR}, v0
    v_cmp_gt_u32 vcc, 16, v0
    s_and_saveexec_b64 s[54:55], vcc
    ds_write_b128 v6, v[60:63] offset:4096
    s_mov_b64 exec, s[54:55]
    s_waitcnt vmcnt(0) lgkmcnt(0)
    s_barrier
    v_sub_u32 v5, 7, v3
    v_and_b32 v5, 7, v5
    v_lshrrev_b32 v6, 1, v4
    v_lshlrev_b32 v6, 4, v6
    v_and_b32 v7, 1, v4
    v_lshlrev_b32 v7, 3, v7
    v_sub_u32 v7, v7, v6
    v_sub_u32 v7, v7, v3
    v_sub_u32 v7, v7, v5
    s_lshl_b32 s19, s18, 5
    v_subrev_u32 v7, s19, v7
    v_add_u32 v7, 127, v7
    v_lshlrev_b32 v7, 1, v7
    v_mul_u32_u24 v5, {CSTR}, v5
    v_add_u32 v5, v5, v7
    """)
    stamp(a, 3)
    a("s_cmp_lg_u32 s57, 0")
    a("s_cbranch_scc1 L_kc_nopf")
    a("s_add_u32 s58, s2, 288")
    pf("s58")
    a.label("L_kc_nopf")
    for r in range(32):
        a(f"v_mov_b32 v{64+r}, 0")
    def aread(m, b):
        a(f"ds_read_b128 v[{b}:{b+3}], v5 offset:{256*(15-m)}")
        a(f"ds_read_b128 v[{b+4}:{b+7}], v5 offset:{ARR + 256*(15-m)}")
    aread(0, 40)
    for m in range(16):
        b = 40 if m % 2 == 0 else 48
        if m < 15:
            aread(m+1, 48 if m % 2 == 0 else 40)
            a("s_waitcnt lgkmcnt(2)")
        else:
            a("s_waitcnt lgkmcnt(0)")
        jmin = m // 2
        for h in range(2):
            for jn in range(jmin, 8):
                i = 2*jn - m + 1
                c = 64 + 4*jn
                a(f"v_mfma_f32_16x16x32_bf16 v[{c}:{c+3}], v[{b+4*h}:{b+4*h+3}], v[{128+4*i}:{131+4*i}], v[{c}:{c+3}]")
    a("s_nop 15")
    stamp(a, 4)
    a("s_barrier")
    a(f"""
    v_lshlrev_b32 v5, 6, v3
    v_lshl_add_u32 v5, v4, 4, v5
    s_lshl_b32 s19, s18, 13
    v_add_u32 v5, s19, v5
    """)
    for jn in range(8):
        a(f"ds_write_b128 v5, v[{64+4*jn}:{67+4*jn}] offset:{jn*1024}")
    a("""
    s_waitcnt lgkmcnt(0)
    s_barrier
    v_lshlrev_b32 v5, 5, v0
    """)
    for w in range(4):
        a(f"ds_read_b128 v[{40+8*w}:{43+8*w}], v5 offset:{w*8192}")
        a(f"ds_read_b128 v[{44+8*w}:{47+8*w}], v5 offset:{w*8192+16}")
    a("s_waitcnt lgkmcnt(0)")
    for r in range(8):
        a(f"v_add_f32 v{40+r}, v{40+r}, v{48+r}")
        a(f"v_add_f32 v{56+r}, v{56+r}, v{64+r}")
        a(f"v_add_f32 v{40+r}, v{40+r}, v{56+r}")
    for k in range(4):
        x, y = 40+2*k, 41+2*k
        rne_pair(a, x, y, 72)
        a(f"v_lshlrev_b32 v73, 16, v{192+k}")
        a(f"v_and_b32 v74, 0xffff0000, v{192+k}")
        a("v_mul_f32 v73, v73, v27")
        a("v_mul_f32 v74, v74, v27")
        rne_pair(a, 73, 74, 72)
        a(f"v_add_f32 v{x}, v{x}, v73")
        a(f"v_add_f32 v{y}, v{y}, v74")
        a(f"v_cvt_pk_bf16_f32 v{76+k}, v{x}, v{y}")
    a("v_lshlrev_b32 v5, 4, v0")
    a("buffer_store_dwordx4 v[76:79], v5, s[48:51], 0 offen")
    a("s_add_u32 s2, s2, 288")
    a("s_add_u32 s57, s57, 1")
    a("s_cmp_lt_u32 s57, 2")
    a("s_barrier")
    a("s_cbranch_scc1 L_kc_loop")
    stamp(a, 5)
    stamp_store(a, 16, 6, "s2", -360)
    a.label("L_kc_done")
    a("s_endpgm")
    if merged: return
    kernel_desc(a, name, 200)
    return (name, 576, 256, P2K + 64)
```
